```python
import torch

def _softmax(x, axis=-1):
    return torch.softmax(x, dim=axis)
def _gelu(x):
    return torch.nn.functional.gelu(x, approximate="tanh")
def _silu(x):
    return torch.nn.functional.silu(x)
def _sigmoid(x):
    return torch.sigmoid(x)
def _layernorm(x, axis=-1, eps=1e-5):
    m = x.mean(dim=axis, keepdim=True)
    v = x.var(dim=axis, keepdim=True, unbiased=False)
    return (x - m) / torch.sqrt(v + eps)
def _scatter_add(tgt, idx, src, axis=0):
    return tgt.clone().index_add_(axis, idx, src)
def _segment_sum(src, seg, n):
    out = torch.zeros((n,) + src.shape[1:], dtype=src.dtype)
    return out.index_add_(0, seg, src)
def _pad(x, pw):
    flat = tuple(v for pair in reversed(pw) for v in pair)
    return torch.nn.functional.pad(x, flat)

kernel_name = 'concat_heads__mha_block__ssm_conv_s4__prompt'

def setup_inputs():

    _w = (lambda a: (lambda t: t.to(torch.bfloat16) if t.is_floating_point() else t)(torch.as_tensor(a)))
    def _A_setup():
        B, S, D, H = 1, 2048, 448, 16
        return {
            "x": _w((lambda *s: torch.randn(*s, dtype=torch.bfloat16) * 0.2)(B, S, D)),
            "wqkv": _w((lambda *s: torch.randn(*s, dtype=torch.bfloat16) * 0.2)(D, 3 * D)),
            "wo": _w((lambda *s: torch.randn(*s, dtype=torch.bfloat16) * 0.05)(D, D)),
        }
    _A_in = _A_setup()

    def _B_setup():
        B, L, D, N = 1, 2048, 448, 256
        A_re = -(lambda _x: torch.exp(torch.as_tensor(_x)))((lambda *s: torch.randn(*s, dtype=torch.bfloat16) * 3.2)(D, N))
        A_im = torch.pi * (lambda *s: torch.randn(*s, dtype=torch.bfloat16) * 0.05)(D, N)
        B_re = (lambda *s: torch.randn(*s, dtype=torch.bfloat16) * 0.2)(D, N)
        B_im = (lambda *s: torch.randn(*s, dtype=torch.bfloat16) * 0.2)(D, N)
        C_re = (lambda *s: torch.randn(*s, dtype=torch.bfloat16) * 0.2)(D, N)
        C_im = (lambda *s: torch.randn(*s, dtype=torch.bfloat16) * 0.2)(D, N)
        log_dt = (lambda *s: torch.randn(*s, dtype=torch.bfloat16) * 0.05)(D) * 0.5 - 4.0
        Dskip = (lambda *s: torch.randn(*s, dtype=torch.bfloat16) * 0.1)(D)
        return {
            "u": _w((lambda *s: torch.randn(*s, dtype=torch.bfloat16) * 0.05)(B, L, D)),
            "A_re": _w(A_re),
            "A_im": _w(A_im),
            "B_re": _w(B_re),
            "B_im": _w(B_im),
            "C_re": _w(C_re),
            "C_im": _w(C_im),
            "log_dt": _w(log_dt),
            "Dskip": _w(Dskip),
        }
    _B_in = _B_setup()

    return {
        "A_x": _A_in["x"],
        "A_wqkv": _A_in["wqkv"],
        "A_wo": _A_in["wo"],
        "B_u": _B_in["u"],
        "B_A_re": _B_in["A_re"],
        "B_A_im": _B_in["A_im"],
        "B_B_re": _B_in["B_re"],
        "B_B_im": _B_in["B_im"],
        "B_C_re": _B_in["C_re"],
        "B_C_im": _B_in["C_im"],
        "B_log_dt": _B_in["log_dt"],
        "B_Dskip": _B_in["Dskip"],
    }

def reference(A_x, A_wqkv, A_wo, B_u, B_A_re, B_A_im, B_B_re, B_B_im, B_C_re, B_C_im, B_log_dt, B_Dskip):
    def _A_ref(x, wqkv, wo):
        B, S, D = x.shape
        H = 16
        Dh = D // H
        qkv = (lambda x, *d: x.permute(*d))((x @ wqkv).reshape(B, S, 3, H, Dh), 2, 0, 3, 1, 4)
        q, k, v = qkv[0], qkv[1], qkv[2]
        scores = torch.einsum("bhqd,bhkd->bhqk", q, k) * (Dh ** -0.5)
        p = _softmax(scores, axis=-1)
        o = torch.einsum("bhqk,bhkd->bhqd", p, v)
        return (lambda x, *d: x.permute(*d))(o, 0, 2, 1, 3).reshape(B, S, D) @ wo

    def _B_ref(u, A_re, A_im, B_re, B_im, C_re, C_im, log_dt, Dskip):
        Bsz, L, D = u.shape
        dt = torch.exp(log_dt)[:, None]
        A = A_re + 1j * A_im
        Bc = B_re + 1j * B_im
        Cc = C_re + 1j * C_im
        logdA = dt * A
        dB = dt * Bc
        l = (lambda x, dt: x.to(dt))(torch.arange(L), A_re.dtype)
        P = torch.exp(logdA[:, :, None] * l[None, None, :])
        K = torch.einsum("dn,dnl,dn->dl", Cc, P, dB).real
        L2 = 2 * L
        Kp = _pad(K, ((0, 0), (0, L)))
        up = (lambda x, *d: x.permute(*d))(u, 0, 2, 1)
        up = _pad(up, ((0, 0), (0, 0), (0, L)))
        Kf = (lambda x, axes=(-2,-1): torch.fft.rfft2(x.float(), dim=axes))(Kp[:, None, :], axes=(-2, -1))
        Uf = (lambda x, axes=(-2,-1): torch.fft.rfft2(x.float(), dim=axes))(up[:, :, None, :], axes=(-2, -1))
        Yf = Uf * Kf[None, :, :, :]
        y = (lambda x, s, axes=(-2,-1): torch.fft.irfft2(x, s=s, dim=axes).to(torch.bfloat16))(Yf, (1, L2), axes=(-2, -1))[:, :, 0, :L]
        y = (lambda x, *d: x.permute(*d))(y, 0, 2, 1) + u * Dskip[None, None, :]
        return y

    a = _A_ref(A_x, A_wqkv, A_wo)
    b = _B_ref(B_u, B_A_re, B_A_im, B_B_re, B_B_im, B_C_re, B_C_im, B_log_dt, B_Dskip)
    return torch.concatenate([a, b], axis=-1)
```

```python
WS_QF = 0
WS_KV = 2<<20
WS_OF = 6<<20
WS_KR = 8<<20
WS_UT = 10<<20
WS_YT = 12<<20
WS_SIZE = 14<<20
KR_STRIDE = 4224
import struct, math
def f2u(x): return struct.unpack('<I', struct.pack('<f', x))[0]
LOG2E = 1.4426950408889634
def srd(k, d, base, size):
    k(f"s_mov_b32 s{d}, s{base}")
    k(f"s_mov_b32 s{d+1}, s{base+1}")
    k(f"s_mov_b32 s{d+2}, {size}")
    k(f"s_mov_b32 s{d+3}, 0x00020000")
MFMA = "v_mfma_f32_32x32x16_bf16"
```

```python
import re

TRANS = ("v_exp_f32","v_log_f32","v_rcp_f32","v_rsq_f32","v_sqrt_f32","v_sin_f32","v_cos_f32")

def regs_of(tok):
    tok = tok.strip()
    neg = tok.startswith('-')
    if neg: tok = tok[1:]
    tok = tok.strip('|')
    m = re.fullmatch(r'([vsa])\[(\d+):(\d+)\]', tok)
    if m: return {(m.group(1), i) for i in range(int(m.group(2)), int(m.group(3))+1)}
    m = re.fullmatch(r'([vsa])(\d+)', tok)
    if m: return {(m.group(1), int(m.group(2)))}
    if tok == 'vcc': return {('s','vcc_lo'),('s','vcc_hi')}
    if tok in ('vcc_lo','vcc_hi'): return {('s',tok)}
    if tok == 'm0': return {('s','m0')}
    if tok == 'exec': return {('s','exec_lo'),('s','exec_hi')}
    if tok in ('exec_lo','exec_hi'): return {('s',tok)}
    return set()

class I:
    def __init__(self, text):
        self.text = text
        t = text.split(';')[0].strip()
        self.label = None
        self.isinst = True
        if not t or t.startswith('.') :
            self.isinst = False; self.op=''; return
        if t.endswith(':'):
            self.label = t[:-1]; self.isinst = False; self.op=''; return
        parts = t.split(None, 1)
        self.op = op = parts[0]
        rest = parts[1] if len(parts) > 1 else ''
        ops = []; cur=''; depth=0
        for ch in rest:
            if ch=='[': depth+=1
            if ch==']': depth-=1
            if ch==',' and depth==0: ops.append(cur); cur=''
            else: cur+=ch
        if cur.strip(): ops.append(cur)
        mods = ''
        if ops:
            l = ops[-1].strip().split(None,1)
            ops[-1] = l[0]
            mods = l[1] if len(l)>1 else ''
        ops = [o.strip() for o in ops]
        self.ops = ops; self.mods = mods
        self.mfma = op.startswith('v_mfma')
        self.valu = op.startswith('v_') and not self.mfma
        self.trans = op.replace('_e32','').replace('_e64','') in TRANS
        self.salu = op.startswith('s_')
        self.ds = op.startswith('ds_')
        self.vmem = op.startswith('buffer_') or op.startswith('global_')
        self.dpp = 'quad_perm' in mods or 'row_' in mods or 'wave_' in mods or op.endswith('_dpp')
        self.ldsdma = self.vmem and re.search(r'\blds\b', mods) is not None
        self.dst=set(); self.src=set(); self.srcC=set(); self.srcAB=set(); self.sdata=set()
        self.nstates = 1
        if op == 's_nop': self.nstates = int(ops[0])+1
        R = [regs_of(o) for o in ops]
        if self.mfma:
            self.dst=R[0]; self.srcAB=R[1]|R[2]; self.srcC=R[3]; self.src=self.srcAB|self.srcC
            self.passes = 8 if '32x32x16' in op else 4
        elif self.valu:
            if op.startswith('v_cmp'):
                self.dst=R[0]; self.src=set().union(*R[1:])
            elif op.startswith('v_permlane32_swap') or op.startswith('v_permlane16_swap') or op.startswith('v_swap'):
                self.dst=R[0]|R[1]; self.src=R[0]|R[1]
            elif op.startswith('v_add_co') or op.startswith('v_sub_co') or op.startswith('v_addc_co'):
                self.dst=R[0]|R[1]; self.src=set().union(*R[2:])
            else:
                self.dst=R[0]; self.src=set().union(*R[1:]) if len(R)>1 else set()
                if op.startswith('v_fmac') or op.startswith('v_pk_fmac') or op.startswith('v_writelane') or self.dpp: self.src |= R[0]
                if op.startswith('v_cndmask') and len(ops)==3: self.src |= regs_of('vcc')
        elif self.ds:
            if op.startswith('ds_read') :
                self.dst=R[0]; self.src=set().union(*R[1:])
            else:
                self.src=set().union(*R)
        elif self.vmem:
            if '_load' in op and not self.ldsdma:
                self.dst=R[0]; self.src=set().union(*R[1:])
            elif '_store' in op:
                self.src=set().union(*R)
                if op.startswith('buffer_'): self.sdata=R[0]
                else: self.sdata=R[1]
            else:
                self.src=set().union(*R)
            if self.ldsdma: self.src |= {('s','m0')}
        elif self.salu:
            if op.startswith('s_cmp') or op.startswith('s_cbranch') or op in ('s_branch','s_waitcnt','s_nop','s_barrier','s_endpgm','s_setprio','s_sleep'):
                self.src=set().union(*R) if R else set()
            else:
                self.dst=R[0] if R else set(); self.src=set().union(*R[1:]) if len(R)>1 else set()
                if 'saveexec' in op: self.dst |= regs_of('exec')
        self.wide_store = self.vmem and '_store' in op and (op.endswith('x4') or op.endswith('x3'))

def V(s): return {r for r in s if r[0] in ('v','a')}
def S(s): return {r for r in s if r[0]=='s'}

def need(p, c):
    n = 0
    if p.valu:
        vd = V(p.dst); sd = S(p.dst)
        if c.mfma and vd & c.src: n=max(n,2)
        if c.valu:
            if p.trans and not c.trans and vd & c.src: n=max(n,1)
            if c.op.startswith('v_permlane') and vd & c.src: n=max(n,2)
            if (c.op.startswith('v_readlane') or c.op.startswith('v_readfirstlane')) and vd & c.src: n=max(n,1)
            if c.dpp and vd & c.src: n=max(n,2)
            if sd & c.src:
                n=max(n,2)
                if c.op.startswith('v_readlane') or c.op.startswith('v_writelane'): n=max(n,4)
            if ('sdwa' in p.op or 'dst_sel' in p.mods) and vd & (c.src|c.dst): n=max(n,1)
        if c.vmem and sd & c.src: n=max(n,5)
    if p.mfma:
        big = 12 if p.passes==8 else 8
        d = p.dst
        if c.valu and d & (c.src|c.dst): n=max(n,big)
        if (c.vmem or c.ds) and d & (c.src|c.dst): n=max(n,big)
        if c.mfma:
            if d & c.srcAB: n=max(n,big)
            if d & c.srcC and not (d == c.srcC and p.passes==c.passes): n=max(n, 10 if p.passes==8 else 6)
        if c.valu and p.srcC & c.dst: n=max(n, 7 if p.passes==8 else 3)
    if p.salu and ('s','m0') in p.dst and (c.ldsdma or 'addtid' in c.op): n=max(n,1)
    if p.wide_store and p.sdata & c.dst:
        n=max(n, 2 if c.valu else 1)
    return n

def fix_hazards(lines):
    ins = [I(l) for l in lines]
    out = []
    nins = 0
    for c in ins:
        if c.isinst:
            dist = 0; req = 0
            for p in reversed(out):
                if not p.isinst: continue
                if p.op in ('s_branch','s_endpgm'): break
                r = need(p, c)
                if r - dist > req: req = r - dist
                dist += p.nstates
                if dist >= 20: break
            if req > 0:
                out.append(I(f"    s_nop {req-1}   ; hazard")); nins += 1
        out.append(c)
    labels = {x.label:i for i,x in enumerate(out) if x.label}
    for i,b in enumerate(out):
        if b.isinst and (b.op.startswith('s_cbranch') or b.op=='s_branch'):
            tgt = labels[b.ops[0]]
            before = [x for x in out[max(0,i-60):i+1] if x.isinst][-20:]
            after = []
            for x in out[tgt:tgt+60]:
                if x.isinst:
                    after.append(x)
                    if x.op in ('s_branch','s_endpgm'): break
            after = after[:20]
            d0 = 0
            for ci,c in enumerate(after):
                dist = d0
                for p in reversed(before):
                    r = need(p,c)
                    if r > dist:
                        raise Exception(f"branch-edge hazard: '{p.text.strip()}' -> '{c.text.strip()}' need {r} have {dist} (branch {b.text.strip()})")
                    dist += p.nstates
                    if dist>=20: break
                d0 += c.nstates
    return [x.text for x in out], nins

class K:
    def __init__(self, name):
        self.name=name; self.L=[]; self.uid=0
    def __call__(self, s):
        for l in s.split('\n'):
            l=l.rstrip()
            if not l.strip(): continue
            if l.strip().endswith(':'): self.L.append(l.strip())
            else: self.L.append('    '+l.strip())
    def lab(self, base):
        self.uid+=1; return f"{self.name}_{base}_{self.uid}"
    def text(self, vgpr, sgpr=102):
        body, n = fix_hazards(self.L)
        hdr = f".globl {self.name}\n.p2align 8\n.type {self.name},@function\n{self.name}:\n"
        return hdr + "\n".join(body) + "\n", n

def vr(a, n=1):
    return f"v{a}" if n==1 else f"v[{a}:{a+n-1}]"
def sr(a, n=1):
    return f"s{a}" if n==1 else f"s[{a}:{a+n-1}]"
```

```python
from dsl import *
from common import *

L_W = 0
L_X = 86016
NSLOT = 3
L_KB = L_X + 4*NSLOT*4096
L_FL = L_KB + 4*4096
LDS1 = L_FL + 64

def signal(k, vfl, vone, idx):
    k("s_mov_b64 exec, 1")
    k(f"ds_add_u32 v{vfl}, v{vone} offset:{4*idx}")
    k("s_mov_b64 exec, -1")
def poll(k, vfl, vt, idx, n):
    L = k.lab("poll")
    k(f"{L}:")
    k(f"ds_read_b32 v{vt}, v{vfl} offset:{4*idx}")
    k("s_waitcnt lgkmcnt(0)")
    k(f"v_readfirstlane_b32 s20, v{vt}")
    k(f"s_cmp_lt_u32 s20, {n}")
    k(f"s_cbranch_scc1 {L}")

def gen_k1(PK=True):
    k = K("k1_kernel")
    k("s_cmp_ge_u32 s2, 256")
    k("s_cbranch_scc1 k1_end")
    k("s_load_dwordx16 s[36:51], s[0:1], 0")
    k("s_load_dwordx8 s[52:59], s[0:1], 64")
    k("s_load_dwordx2 s[60:61], s[0:1], 112")
    k("v_lshrrev_b32 v1, 6, v0")
    k("v_and_b32 v0, 63, v0")
    k("v_readfirstlane_b32 s3, v1")
    k("s_and_b32 s6, s2, 7")
    k("s_lshr_b32 s7, s2, 3")
    k("s_and_b32 s4, s6, 1")
    k("s_lshl_b32 s4, s4, 3")
    k("s_lshr_b32 s20, s7, 2")
    k("s_add_u32 s4, s4, s20")
    k("s_lshr_b32 s5, s6, 1")
    k("s_lshl_b32 s5, s5, 2")
    k("s_and_b32 s20, s7, 3")
    k("s_add_u32 s5, s5, s20")
    k("s_cmp_ge_u32 s3, 4")
    k("s_cbranch_scc1 k1_kgen")
    vW, vX0, vX1 = 2, 3, 4
    k(f"v_lshrrev_b32 v{vW}, 2, v0")
    k(f"v_mul_u32_u24 v{vW}, 2688, v{vW}")
    k("v_and_b32 v5, 3, v0")
    k(f"v_lshl_add_u32 v{vW}, v5, 4, v{vW}")
    k("v_lshrrev_b32 v5, 3, v0")
    k("v_mul_u32_u24 v5, 896, v5")
    k("v_lshrrev_b32 v6, 4, v0")
    k("v_and_b32 v7, 7, v0")
    k("v_xor_b32 v6, v6, v7")
    k(f"v_lshl_add_u32 v{vX0}, v6, 4, v5")
    k("v_xor_b32 v6, 4, v6")
    k(f"v_lshl_add_u32 v{vX1}, v6, 4, v5")
    k("s_mul_i32 s21, s3, 43008")
    k("s_mul_i32 s20, s4, 56")
    k("s_add_u32 s21, s21, s20")
    k("s_lshl_b32 s22, s3, 10")
    k("s_lshl_b32 s23, s5, 2")
    k("s_add_u32 s23, s23, s3")
    k("s_mul_i32 s24, s23, 28672")
    k(f"s_mul_i32 s25, s3, {NSLOT*4096}")
    k(f"s_add_u32 s25, s25, {L_X}")
    k("s_waitcnt lgkmcnt(0)")
    srd(k, 8, 36, 1835008)
    srd(k, 12, 38, 1204224)
    srd(k, 16, 60, WS_SIZE)
    issued = []
    def dmaW(s):
        for m in range(3):
            k(f"s_add_u32 m0, s22, {L_W + m*28672 + s*4096}")
            k(f"s_add_u32 s20, s21, {s*64*2688 + m*896}")
            k(f"buffer_load_dwordx4 v{vW}, s[12:15], s20 offen lds")
            issued.append(('W',s))
    def dmaX(s):
        for i in range(4):
            k(f"s_add_u32 m0, s25, {(s%NSLOT)*4096 + i*1024}")
            k(f"s_add_u32 s20, s24, {i*8*896 + s*128}")
            k(f"buffer_load_dwordx4 v{vX1 if i&1 else vX0}, s[8:11], s20 offen lds")
            issued.append(('X',s))
    for s in range(7):
        dmaW(s)
        if s < NSLOT: dmaX(s)
    vXr = [8,9,10,11]; vT, vT2, vFl, vOne, vTmp = 12, 13, 14, 15, 5
    k("v_and_b32 v5, 31, v0")
    k("v_lshrrev_b32 v6, 5, v0")
    k("v_bfe_u32 v7, v0, 1, 3")
    k("v_xor_b32 v6, v6, v7")
    k("v_lshlrev_b32 v5, 7, v5")
    k("v_add_u32 v5, s25, v5")
    for ks in range(4):
        k(f"v_xor_b32 v7, {2*ks}, v6")
        k(f"v_lshl_add_u32 v{vXr[ks]}, v7, 4, v5")
    k("v_bfe_u32 v5, v0, 2, 2")
    k(f"v_lshlrev_b32 v{vT}, 6, v5")
    k("v_and_b32 v5, 3, v0")
    k(f"v_lshl_add_u32 v{vT}, v5, 3, v{vT}")
    k("v_bfe_u32 v5, v0, 4, 1")
    k(f"v_lshl_add_u32 v{vT}, v5, 5, v{vT}")
    k("v_lshrrev_b32 v5, 5, v0")
    k(f"v_lshl_add_u32 v{vT}, v5, 9, v{vT}")
    k(f"v_add_u32 v{vT2}, {L_W+57344}, v{vT}")
    k(f"v_mov_b32 v{vFl}, {L_FL}")
    k(f"v_mov_b32 v{vOne}, 1")
    k("s_barrier")
    DQ, DK, DV = 16, 32, 48
    FB = [64, 80]
    def reads(ksg):
        s, ks = ksg//4, ksg%4
        b = FB[ksg&1]
        k(f"ds_read_b128 v[{b}:{b+3}], v{vXr[ks]} offset:{(s%NSLOT)*4096}")
        for m in range(3):
            for hf in range(2):
                if m < 2: a, off = vT, L_W + m*28672 + ksg*1024 + hf*256
                else: a, off = vT2, ksg*1024 + hf*256
                r = b+4+4*m+2*hf
                k(f"ds_read_b64_tr_b16 v[{r}:{r+1}], v{a} offset:{off}")
    def mfmas(ksg):
        b = FB[ksg&1]
        x = f"v[{b}:{b+3}]"
        c = lambda D: "0" if ksg==0 else f"v[{D}:{D+15}]"
        k(f"{MFMA} v[{DQ}:{DQ+15}], v[{b+4}:{b+7}], {x}, {c(DQ)}")
        k(f"{MFMA} v[{DK}:{DK+15}], v[{b+8}:{b+11}], {x}, {c(DK)}")
        k(f"{MFMA} v[{DV}:{DV+15}], {x}, v[{b+12}:{b+15}], {c(DV)}")
    def vmwait(tags):
        last = max(i for i,t in enumerate(issued) if t in tags)
        k(f"s_waitcnt vmcnt({len(issued)-1-last})")
    for s in range(7):
        if s > 0:
            k("s_waitcnt lgkmcnt(0)")
            mfmas(4*s-1)
            if s-1+NSLOT < 7: dmaX(s-1+NSLOT)
        if s < NSLOT:
            vmwait([('W',s),('X',s)]); signal(k, vFl, vOne, s); poll(k, vFl, vTmp, s, 4)
        elif s == NSLOT:
            vmwait([('W',6),('X',s)]); signal(k, vFl, vOne, s); poll(k, vFl, vTmp, s, 4)
        else:
            vmwait([('X',s)])
        reads(4*s)
        for ks in range(1,4):
            reads(4*s+ks)
            k("s_waitcnt lgkmcnt(7)")
            mfmas(4*s+ks-1)
    k("s_waitcnt lgkmcnt(0)")
    mfmas(27)
    k(f"s_mov_b32 s26, {hex(f2u(28**-0.5*LOG2E))}")
    k("s_lshl_b32 s27, s4, 6")
    k("s_add_u32 s27, s27, s23")
    k("s_lshl_b32 s28, s27, 11")
    k("s_lshl_b32 s29, s27, 12")
    k(f"s_add_u32 s29, s29, {WS_KV}")
    k("v_lshlrev_b32 v1, 4, v0")
    PQ, PK_, PV = 64, 72, 80
    for r in range(16): k(f"v_mul_f32 v{DQ+r}, s26, v{DQ+r}")
    for i in range(8): k(f"v_cvt_pk_bf16_f32 v{PQ+i}, v{DQ+2*i}, v{DQ+2*i+1}")
    for i in range(8): k(f"v_cvt_pk_bf16_f32 v{PK_+i}, v{DK+2*i}, v{DK+2*i+1}")
    for i in range(8): k(f"v_cvt_pk_bf16_f32 v{PV+i}, v{DV+2*i}, v{DV+2*i+1}")
    k("s_mov_b32 exec_lo, 0")
    k(f"v_mov_b32 v{PQ+6}, 0")
    k(f"v_mov_b32 v{PQ+7}, 0")
    k(f"v_mov_b32 v{PK_+6}, 0x3f803f80")
    k(f"v_mov_b32 v{PK_+7}, 0x00003f80")
    k("s_mov_b32 exec_lo, 0x10000000")
    k("s_mov_b32 exec_hi, 0x10000000")
    for i in range(8): k(f"v_mov_b32 v{PV+i}, 0x3f803f80")
    k("s_mov_b32 exec_lo, 0xe0000000")
    k("s_mov_b32 exec_hi, 0xe0000000")
    for i in range(8): k(f"v_mov_b32 v{PV+i}, 0")
    k("s_mov_b64 exec, -1")
    k(f"buffer_store_dwordx4 v[{PQ}:{PQ+3}], v1, s[16:19], s28 offen")
    k(f"buffer_store_dwordx4 v[{PQ+4}:{PQ+7}], v1, s[16:19], s28 offen offset:1024")
    k(f"buffer_store_dwordx4 v[{PK_}:{PK_+3}], v1, s[16:19], s29 offen")
    k(f"buffer_store_dwordx4 v[{PK_+4}:{PK_+7}], v1, s[16:19], s29 offen offset:1024")
    k(f"buffer_store_dwordx4 v[{PV}:{PV+3}], v1, s[16:19], s29 offen offset:2048")
    k(f"buffer_store_dwordx4 v[{PV+4}:{PV+7}], v1, s[16:19], s29 offen offset:3072")
    k("s_endpgm")

    k("k1_kgen:")
    k("s_sub_u32 s3, s3, 4")
    k("v_lshlrev_b32 v1, 2, v0")
    k("v_and_b32 v2, 60, v1")
    k(f"v_add_u32 v2, {L_FL}, v2")
    k("v_mov_b32 v3, 0")
    k("ds_write_b32 v2, v3")
    k("s_cmp_ge_u32 s2, 224")
    k("s_cbranch_scc1 k1_kidle")
    k("s_and_b32 s21, s3, 1")
    k("s_lshl_b32 s22, s2, 1")
    k("s_add_u32 s22, s22, s21")
    k("s_lshr_b32 s23, s3, 1")
    k("s_lshl_b32 s24, s22, 9")
    k("s_lshl_b32 s20, s23, 8")
    k("s_add_u32 s24, s24, s20")
    k("v_add_u32 v1, s24, v1")
    k("s_lshl_b32 s25, s2, 2")
    k("s_lshl_b32 s26, s2, 2")
    k("s_add_u32 s26, s26, s3")
    k("s_mul_i32 s27, s26, 4682")
    k("s_lshr_b32 s27, s27, 16")
    k("s_mul_i32 s20, s27, 14")
    k("s_sub_u32 s28, s26, s20")
    k("s_lshl_b32 s29, s3, 12")
    k(f"s_add_u32 s29, s29, {L_KB}")
    k("v_lshrrev_b32 v8, 2, v0")
    k("v_mul_u32_u24 v8, 896, v8")
    k("v_and_b32 v9, 3, v0")
    k("v_lshl_add_u32 v8, v9, 4, v8")
    k("s_mul_i32 s30, s27, 28672")
    k("s_lshl_b32 s20, s28, 6")
    k("s_add_u32 s30, s30, s20")
    k("s_waitcnt lgkmcnt(0)")
    k("s_load_dword s62, s[56:57], s25")
    k("s_load_dword s63, s[58:59], s25")
    for j,b in enumerate((44,46,48,50,52,54)):
        k(f"global_load_dword v{2+j}, v1, s[{b}:{b+1}]")
    srd(k, 8, 42, 1835008)
    srd(k, 16, 60, WS_SIZE)
    k("s_mov_b32 m0, s29")
    k("s_add_u32 s31, s30, 14336")
    k("buffer_load_dwordx4 v8, s[8:11], s30 offen lds")
    k("s_add_u32 m0, s29, 1024")
    k("s_nop 0")
    k("buffer_load_dwordx4 v8, s[8:11], s31 offen lds")
    vT0, vT1 = 8, 9
    vWa = [10,11,12,13]
    vU = 46
    k("v_bfe_u32 v14, v0, 2, 2")
    k("v_lshrrev_b32 v15, 5, v0")
    k("v_lshlrev_b32 v16, 6, v14")
    k("v_lshl_add_u32 v16, v15, 9, v16")
    k("v_add_u32 v16, s29, v16")
    k("v_and_b32 v17, 1, v0")
    k("v_lshl_add_u32 v16, v17, 3, v16")
    k("v_bfe_u32 v17, v0, 1, 1")
    k("v_bfe_u32 v18, v0, 4, 1")
    k("v_lshl_add_u32 v17, v18, 1, v17")
    k(f"v_lshl_add_u32 v{vU}, v17, 4, v16")
    k("v_bfe_u32 v18, v0, 3, 1")
    k("v_xor_b32 v17, v17, v18")
    k(f"v_lshl_add_u32 v{vT0}, v17, 4, v16")
    k("v_xor_b32 v17, 2, v17")
    k(f"v_lshl_add_u32 v{vT1}, v17, 4, v16")
    k(f"v_add_u32 v{vT1}, 256, v{vT1}")
    k("v_lshlrev_b32 v16, 6, v0")
    k("v_add_u32 v16, s29, v16")
    k("v_bfe_u32 v17, v0, 1, 2")
    for c in range(4):
        k(f"v_xor_b32 v18, {c}, v17")
        k(f"v_lshl_add_u32 v{vWa[c]}, v18, 4, v16")
    k("s_waitcnt lgkmcnt(0)")
    k("s_barrier")
    k("s_lshl_b32 s21, s21, 4")
    k("s_lshr_b32 s62, s62, s21")
    k("s_lshl_b32 s62, s62, 16")
    k("s_lshr_b32 s63, s63, s21")
    k("s_lshl_b32 s63, s63, 16")
    k(f"v_mov_b32 v14, {hex(f2u(LOG2E))}")
    k("v_mul_f32 v14, s62, v14")
    k("v_exp_f32 v14, v14")
    k("v_cvt_pk_bf16_f32 v14, v14, v14")
    k("v_and_b32 v14, 0xffff0000, v14")
    k("v_readfirstlane_b32 s64, v14")
    k("s_waitcnt vmcnt(0)")
    UF = 160
    for kk in range(2):
        for hf in range(2):
            k(f"ds_read_b64_tr_b16 v[{UF+4*kk+2*hf}:{UF+4*kk+2*hf+1}], v{vU} offset:{kk*1024+hf*256}")
    k("v_and_b32 v44, 31, v0")
    k("v_lshlrev_b32 v44, 12, v44")
    k("v_lshrrev_b32 v45, 5, v0")
    k("v_lshl_add_u32 v44, v45, 4, v44")
    k("s_lshl_b32 s30, s28, 17")
    k("s_lshl_b32 s20, s27, 6")
    k("s_add_u32 s30, s30, s20")
    k(f"s_add_u32 s30, s30, {WS_UT}")
    Z1, Z8, Z256, W, Z2, Z4 = 14, 16, 18, 20, 22, 24
    PR, PI = 48, 64
    LRE, LIM, HRE, HIM, ACC = 80, 96, 112, 128, 144
    def cmul(d, a, b):
        if PK:
            k(f"v_pk_mul_f32 v[{d}:{d+1}], v[{a}:{a+1}], v[{b}:{b+1}] op_sel:[0,0] op_sel_hi:[1,0]")
            k(f"v_pk_fma_f32 v[{d}:{d+1}], v[{a}:{a+1}], v[{b}:{b+1}], v[{d}:{d+1}] op_sel:[1,1,0] op_sel_hi:[0,1,1] neg_lo:[1,0,0]")
        else:
            k(f"v_mul_f32 v{d}, v{a}, v{b}")
            k(f"v_mul_f32 v{d+1}, v{a+1}, v{b}")
            k(f"v_fma_f32 v{d}, -v{a+1}, v{b+1}, v{d}")
            k(f"v_fmac_f32 v{d+1}, v{a}, v{b+1}")
    def prep(j):
        for q in range(6):
            if j == 0: k(f"v_lshlrev_b32 v{26+q}, 16, v{2+q}")
            else: k(f"v_and_b32 v{26+q}, 0xffff0000, v{2+q}")
        k("v_mul_f32 v26, s64, v26")
        k("v_mul_f32 v27, s64, v27")
        k("v_mul_f32 v28, s64, v28")
        k("v_mul_f32 v29, s64, v29")
        k(f"v_mul_f32 v26, {hex(f2u(LOG2E))}, v26")
        k(f"v_mul_f32 v27, {hex(f2u(1/(2*math.pi)))}, v27")
        cmul(W, 30, 28)
        for z, sc in ((Z1,1.0),(Z8,8.0),(Z256,256.0)):
            if sc == 1.0:
                k("v_exp_f32 v32, v26"); k("v_fract_f32 v33, v27")
            else:
                k(f"v_mul_f32 v32, {hex(f2u(sc))}, v26")
                k(f"v_mul_f32 v33, {hex(f2u(sc))}, v27")
                k("v_exp_f32 v32, v32"); k("v_fract_f32 v33, v33")
            k(f"v_cos_f32 v{z}, v33")
            k(f"v_sin_f32 v{z+1}, v33")
            k(f"v_mul_f32 v{z}, v32, v{z}")
            k(f"v_mul_f32 v{z+1}, v32, v{z+1}")
    def plane(P, F, nch):
        for c in range(nch):
            k(f"ds_write_b128 v{vWa[c]}, v[{P+4*c}:{P+4*c+3}]")
        for ks in range(4):
            k(f"ds_read_b64_tr_b16 v[{F+4*ks}:{F+4*ks+1}], v{vT0} offset:{ks*1024}")
            k(f"ds_read_b64_tr_b16 v[{F+4*ks+2}:{F+4*ks+3}], v{vT1} offset:{ks*1024}")
    T = [34, 36, 38, 40]
    def Lchain():
        k(f"v_cvt_pk_bf16_f32 v{PR}, 1.0, v{Z8}")
        k(f"v_cvt_pk_bf16_f32 v{PI}, 0, v{Z8+1}")
        prev = Z8
        for j in range(1,16):
            a, b = T[(2*j)%4], T[(2*j+1)%4]
            cmul(a, prev, Z8); cmul(b, a, Z8)
            k(f"v_cvt_pk_bf16_f32 v{PR+j}, v{a}, v{b}")
            k(f"v_cvt_pk_bf16_f32 v{PI+j}, v{a+1}, v{b+1}")
            prev = b
        plane(PR, LRE, 4); plane(PI, LIM, 4)
    def pack(j, a, b):
        k(f"v_cvt_pk_bf16_f32 v{PR+j}, v{a}, v{b}")
        k(f"v_cvt_pk_bf16_f32 v{PI+j}, -v{a+1}, -v{b+1}")
    def Hchain():
        A,B,C,D = T
        cmul(Z2, Z1, Z1); cmul(Z4, Z2, Z2)
        cmul(A, W, Z1); pack(0, W, A)
        cmul(B, A, Z1); cmul(C, B, Z1); pack(1, B, C)
        cmul(D, C, Z1); cmul(A, D, Z1); pack(2, D, A)
        cmul(B, A, Z1); cmul(C, B, Z1); pack(3, B, C)
        G = 42
        cmul(G, W, Z256); cmul(A, G, Z2); pack(4, G, A)
        cmul(B, A, Z2); cmul(C, B, Z2); pack(5, B, C)
        cmul(D, G, Z256); cmul(A, D, Z4); pack(6, D, A)
        cmul(G, D, Z256); cmul(A, G, Z4); pack(7, G, A)
        cmul(B, G, Z256); cmul(C, B, Z256); pack(8, B, C)
        cmul(D, C, Z256); cmul(A, D, Z256); pack(9, D, A)
        cmul(B, A, Z256); pack(10, B, B)
        plane(PR, HRE, 3); plane(PI, HIM, 3)
    def kmf(first):
        k("s_waitcnt lgkmcnt(0)")
        for ks in range(4):
            c = "0" if (first and ks==0) else f"v[{ACC}:{ACC+15}]"
            k(f"{MFMA} v[{ACC}:{ACC+15}], v[{HRE+4*ks}:{HRE+4*ks+3}], v[{LRE+4*ks}:{LRE+4*ks+3}], {c}")
            k(f"{MFMA} v[{ACC}:{ACC+15}], v[{HIM+4*ks}:{HIM+4*ks+3}], v[{LIM+4*ks}:{LIM+4*ks+3}], v[{ACC}:{ACC+15}]")
    prep(0)
    k("s_waitcnt lgkmcnt(0)")
    k(f"buffer_store_dwordx4 v[{UF}:{UF+3}], v44, s[16:19], s30 offen")
    k(f"buffer_store_dwordx4 v[{UF+4}:{UF+7}], v44, s[16:19], s30 offen offset:32")
    Lchain(); Hchain(); prep(1); kmf(True); Lchain(); Hchain()
    k("v_and_b32 v26, 31, v0")
    k("v_lshrrev_b32 v27, 5, v0")
    k("v_lshlrev_b32 v28, 5, v26")
    k("v_lshl_add_u32 v28, v27, 4, v28")
    k("v_add_u32 v28, s29, v28")
    k("v_lshlrev_b32 v29, 4, v26")
    k("v_add_u32 v29, 1024, v29")
    k("v_add_u32 v30, 8, v29")
    k("s_mov_b32 exec_lo, 0")
    k("v_lshlrev_b32 v29, 3, v26")
    k("v_add_u32 v29, 1536, v29")
    k("v_add_u32 v30, 256, v29")
    k("s_mov_b32 exec_lo, -1")
    k("v_add_u32 v29, s29, v29")
    k("v_add_u32 v30, s29, v30")
    k("v_lshlrev_b32 v31, 2, v26")
    k("v_lshl_add_u32 v31, v27, 9, v31")
    k("v_add_u32 v31, s29, v31")
    k(f"v_mov_b32 v32, {L_FL+16}")
    k("s_and_b32 s20, s3, 1")
    k("s_lshl_b32 s20, s20, 2")
    k("v_add_u32 v32, s20, v32")
    k("v_mov_b32 v33, 1")
    kmf(False)
    k(f"ds_write_b128 v28, v[{ACC}:{ACC+3}]")
    k(f"ds_write_b64 v29, v[{ACC+4}:{ACC+5}]")
    k(f"ds_write_b64 v30, v[{ACC+6}:{ACC+7}]")
    for i in range(4): k(f"ds_write_b32 v31, v{ACC+8+i} offset:{2048+128*i}")
    signal(k, 32, 33, 0)
    k("s_and_b32 s20, s3, 1")
    k("s_lshl_b32 s20, s20, 12")
    k(f"s_add_u32 s31, s20, {L_KB}")
    k(f"s_mul_i32 s30, s22, {KR_STRIDE}")
    k(f"s_add_u32 s30, s30, {WS_KR}")
    k("v_lshlrev_b32 v34, 4, v0")
    k("v_sub_u32 v34, 4080, v34")
    k("v_lshlrev_b32 v35, 2, v0")
    k("v_add_u32 v35, s31, v35")
    k("v_and_b32 v36, 1, v0")
    k("v_cmp_eq_u32 s[66:67], 1, v36")
    poll(k, 32, 26, 0, 2)
    k("s_cmp_eq_u32 s23, 1")
    k("s_cbranch_scc1 k1_exp1")
    def t4(i, R):
        off = 512 + 64*(i-2)
        k(f"v_add_u32 v37, {off*4}, v35")
        k(f"ds_read2_b32 v[{R}:{R+1}], v37 offset0:0 offset1:1")
        k(f"v_add_u32 v37, 8192, v37")
        k(f"ds_read2_b32 v[{R+2}:{R+3}], v37 offset0:0 offset1:1")
    def t4fin(i, R, O):
        k(f"v_add_f32 v{R}, v{R}, v{R+2}")
        k(f"v_add_f32 v{R+1}, v{R+1}, v{R+3}")
        k(f"v_cndmask_b32 v{R+2}, v{R}, v{R+1}, s[66:67]")
        k(f"v_cvt_pk_bf16_f32 v{O}, v{R+1}, v{R+1}")
        k(f"v_cvt_pk_bf16_f32 v{O+1}, v{R+1}, v{R+2}")
        k(f"v_cvt_pk_bf16_f32 v{O+2}, v{R}, v{R}")
        k(f"v_cvt_pk_bf16_f32 v{O+3}, v{R}, v{R}")
        k(f"s_sub_u32 s20, s30, {1024*i}")
        k(f"buffer_store_dwordx4 v[{O}:{O+3}], v34, s[16:19], s20 offen")
    k("v_lshlrev_b32 v38, 5, v0")
    k("s_mov_b32 exec_lo, 0")
    k("v_lshlrev_b32 v38, 4, v0")
    k("v_add_u32 v38, 512, v38")
    k("s_mov_b32 exec_lo, -1")
    k("v_add_u32 v38, s31, v38")
    k("ds_read_b128 v[48:51], v38")
    k("ds_read_b128 v[52:55], v38 offset:16")
    k("ds_read_b128 v[56:59], v38 offset:8192")
    k("ds_read_b128 v[60:63], v38 offset:8208")
    t4(2, 64)
    k("s_waitcnt lgkmcnt(0)")
    for e in range(8): k(f"v_add_f32 v{48+e}, v{48+e}, v{56+e}")
    k("s_mov_b32 exec_lo, 0")
    pat = [0,0,1,2,2,2,3,4]
    for e in range(7,0,-1): k(f"v_mov_b32 v{48+e}, v{48+pat[e]}")
    k("s_mov_b64 exec, 1")
    k("v_add_f32 v48, s63, v48")
    k("s_mov_b64 exec, -1")
    for i in range(4): k(f"v_cvt_pk_bf16_f32 v{56+i}, v{55-2*i}, v{54-2*i}")
    k("buffer_store_dwordx4 v[56:59], v34, s[16:19], s30 offen")
    t4fin(2, 64, 68)
    k("s_endpgm")
    k("k1_exp1:")
    k("v_lshlrev_b32 v38, 3, v0")
    k("v_add_u32 v38, s31, v38")
    k("ds_read_b64 v[48:49], v38 offset:1536")
    k("ds_read_b32 v50, v38 offset:1544")
    k(f"ds_read_b64 v[52:53], v38 offset:{1536+8192}")
    k(f"ds_read_b32 v54, v38 offset:{1544+8192}")
    t4(3, 64)
    for i in range(4): k(f"v_mov_b32 v{72+i}, 0")
    k("v_lshlrev_b32 v39, 4, v0")
    k("s_add_u32 s21, s30, 4096")
    k("s_mov_b64 exec, 0xff")
    k("buffer_store_dwordx4 v[72:75], v39, s[16:19], s21 offen")
    k("s_mov_b64 exec, -1")
    k("s_waitcnt lgkmcnt(0)")
    for e in range(3): k(f"v_add_f32 v{48+e}, v{48+e}, v{52+e}")
    k("v_cvt_pk_bf16_f32 v56, v50, v50")
    k("v_cvt_pk_bf16_f32 v57, v49, v49")
    k("v_cvt_pk_bf16_f32 v58, v49, v48")
    k("v_cvt_pk_bf16_f32 v59, v48, v48")
    k("s_sub_u32 s20, s30, 1024")
    k("buffer_store_dwordx4 v[56:59], v34, s[16:19], s20 offen")
    t4fin(3, 64, 68)
    k("s_endpgm")
    k("k1_kidle:")
    k("s_waitcnt lgkmcnt(0)")
    k("s_barrier")
    k("k1_end:")
    k("s_endpgm")
    return k, 168, LDS1
```

```python
from dsl import *
from common import *

FL = 0
LP = 256
MP = LP + 2048
RB = MP + 2048
RD = 4*4160
UB = RB + 2*RD
UD = 96*80
PART = UB + 2*UD
CB = PART + 6*4096
LDS2 = CB + 49152

vL16, vFl, vOne, vT = 1, 2, 3, 4
vA, vB = 8, 9
Q = [12, 20]; KB = [28, 36]; VB = [44, 52]; S = [60, 76]; P = [92, 100]; O = [108, 124]
CA, FA, FB = 140, 156, 164
NV = 172

def signal(k, idx_off):
    k("s_mov_b64 exec, 1")
    k(f"ds_add_u32 v{vFl}, v{vOne} offset:{idx_off}")
    k("s_mov_b64 exec, -1")
def poll(k, vaddr, off, n):
    L = k.lab("poll")
    k(f"{L}:")
    k(f"ds_read_b32 v{vT}, v{vaddr} offset:{off}")
    k("s_waitcnt lgkmcnt(0)")
    k(f"v_readfirstlane_b32 s20, v{vT}")
    k(f"s_cmp_lt_u32 s20, {n}")
    k(f"s_cbranch_scc1 {L}")

def r4(a): return f"v[{a}:{a+3}]"
def r16(a): return f"v[{a}:{a+15}]"

def gen_k2(N1=2):
    k = K("k2_kernel")
    k("s_cmp_ge_u32 s2, 256")
    k("s_cbranch_scc1 k2_end")
    k("s_load_dwordx2 s[24:25], s[0:1], 112")
    k("v_lshrrev_b32 v1, 6, v0")
    k("v_and_b32 v0, 63, v0")
    k("v_readfirstlane_b32 s3, v1")
    k(f"v_lshlrev_b32 v{vL16}, 4, v0")
    k("s_and_b32 s4, s2, 7")
    k("s_lshl_b32 s4, s4, 1")
    k("s_lshr_b32 s5, s2, 3")
    k("s_lshr_b32 s20, s5, 4")
    k("s_add_u32 s4, s4, s20")
    k("s_and_b32 s5, s5, 15")
    k("s_lshr_b32 s6, s3, 2")
    k("s_and_b32 s7, s3, 3")
    k("s_lshl_b32 s26, s5, 2")
    k("s_lshl_b32 s20, s6, 1")
    k("s_add_u32 s26, s26, s20")
    k("s_lshl_b32 s20, s4, 6")
    k("s_add_u32 s22, s20, s26")
    k("s_lshl_b32 s22, s22, 11")
    k("s_lshl_b32 s23, s7, 4")
    k("s_add_u32 s23, s23, s20")
    k("s_lshl_b32 s23, s23, 12")
    k(f"s_add_u32 s23, s23, {WS_KV}")
    k("s_and_b32 s27, s3, 1")
    k("s_lshr_b32 s28, s3, 1")
    k("s_lshl_b32 s21, s2, 1")
    k("s_add_u32 s21, s21, s27")
    k("s_mov_b32 s19, 0")
    k(f"s_mul_i32 s20, s27, {UD}")
    k("s_mul_i32 s29, s28, 640")
    k("s_add_u32 s20, s20, s29")
    k(f"s_add_u32 s20, s20, {UB}")
    k(f"v_add_u32 v5, s20, v{vL16}")
    k("s_mul_i32 s20, s3, 4160")
    k(f"s_add_u32 s20, s20, {RB+4096-640}")
    k("s_mov_b32 exec_lo, 0")
    k("s_mov_b32 exec_hi, 0x0f00")
    k(f"v_add_u32 v5, s20, v{vL16}")
    k("s_mov_b32 exec_hi, 0xf000")
    k(f"v_add_u32 v5, {FL-704}, v{vL16}")
    k("s_mov_b64 exec, -1")
    for i in range(4): k(f"v_mov_b32 v{FA+i}, 0")
    k("s_mov_b32 exec_hi, 0xffff")
    k(f"ds_write_b128 v5, {r4(FA)}")
    k("s_mov_b64 exec, -1")
    k(f"v_mov_b32 v{vFl}, {FL}")
    k(f"v_mov_b32 v{vOne}, 1")
    k("s_waitcnt lgkmcnt(0)")
    srd(k, 8, 24, WS_SIZE)
    def ld(dst, s, off): k(f"buffer_load_dwordx4 {r4(dst)}, v{vL16}, s[8:11], s{s} offen" + (f" offset:{off}" if off else ""))
    def kvloads():
        k("s_add_u32 s12, s23, 4096")
        k("s_add_u32 s13, s23, 8192")
        k("s_add_u32 s14, s23, 12288")
        ld(KB[0], 23, 0); ld(KB[0]+4, 23, 1024)
        ld(KB[1], 12, 0); ld(KB[1]+4, 12, 1024)
        ld(VB[0], 23, 2048); ld(VB[0]+4, 23, 3072)
    def qloads():
        for i in range(4): ld(Q[0]+4*i, 22, 1024*i)
    k("s_mov_b32 s15, 8"); k("s_mov_b32 s17, 0"); k("s_mov_b32 s18, 0")
    k("s_cmp_ge_u32 s3, 4")
    k("s_cbranch_scc0 k2_heavy")
    qloads(); kvloads()
    k("s_barrier")
    k("s_cmp_ge_u32 s2, 224")
    k("s_cbranch_scc1 k2_start")
    k(f"s_mov_b32 s15, {N1}"); k("s_mov_b32 s17, 4"); k(f"s_mov_b32 s18, {4-N1}")
    k("s_branch k2_start")
    k("k2_heavy:")
    k("s_barrier")
    k("s_cmp_ge_u32 s2, 224")
    k("s_cbranch_scc1 k2_heavy_noconv")
    k("s_mov_b32 s15, 0"); k("s_mov_b32 s17, 8")
    k(f"s_mul_i32 s29, s21, {KR_STRIDE}")
    k(f"s_add_u32 s29, s29, {WS_KR}")
    k("s_lshl_b32 s20, s28, 2")
    k("s_add_u32 s29, s29, s20")
    k(f"s_mul_i32 s30, s27, {RD}")
    k("s_mul_i32 s20, s28, 8320")
    k("s_add_u32 s30, s30, s20")
    k(f"s_add_u32 s30, s30, {RB}")
    for c in range(2):
        for i in range(4):
            k(f"s_add_u32 m0, s30, {c*4160+i*1024}")
            k(f"s_add_u32 s20, s29, {2*c+i*1024}")
            k(f"buffer_load_dwordx4 v{vL16}, s[8:11], s20 offen lds")
    k("s_lshl_b32 s29, s21, 12")
    k(f"s_add_u32 s29, s29, {WS_UT}")
    k(f"s_mul_i32 s30, s27, {UD}")
    k("s_lshl_b32 s20, s28, 11")
    k("s_add_u32 s30, s30, s20")
    k(f"s_add_u32 s30, s30, {UB+2560}")
    k("s_lshl_b32 s31, s28, 7")
    for i in range(3):
        k(f"v_add_u32 v5, s31, v0")
        if i: k(f"v_add_u32 v5, {64*i}, v5")
        k("v_mul_u32_u24 v6, 52429, v5")
        k("v_lshrrev_b32 v6, 18, v6")
        k("v_mul_u32_u24 v7, 5, v6")
        k("v_sub_u32 v5, v5, v7")
        k("v_min_u32 v5, 3, v5")
        k("v_lshlrev_b32 v5, 4, v5")
        k(f"v_lshl_add_u32 v{FB+i}, v6, 6, v5")
        k(f"s_add_u32 m0, s30, {i*1024}")
        k("s_nop 0")
        k(f"buffer_load_dwordx4 v{FB+i}, s[8:11], s29 offen lds")
    k("k2_heavy_noconv:")
    qloads(); kvloads()
    k("k2_start:")
    k("v_and_b32 v5, 3, v0")
    k("v_sub_u32 v5, 3, v5")
    k("v_mul_u32_u24 v5, 4160, v5")
    k("v_bfe_u32 v6, v0, 2, 3")
    k("v_lshlrev_b32 v6, 3, v6")
    k("v_sub_u32 v5, v5, v6")
    k("v_lshrrev_b32 v6, 5, v0")
    k("v_lshlrev_b32 v6, 4, v6")
    k("v_add_u32 v5, v5, v6")
    k("s_max_u32 s29, s28, 1")
    k("s_sub_u32 s29, s29, 1")
    k("s_lshl_b32 s29, s29, 4")
    k("s_cmp_ge_u32 s28, 2")
    k("s_cselect_b32 s20, 16, 0")
    k("s_add_u32 s29, s29, s20")
    k(f"s_mul_i32 s30, s27, {RD}")
    k(f"s_add_u32 s30, s30, {RB+4088-256}")
    k("s_lshl_b32 s20, s29, 6")
    k("s_sub_u32 s30, s30, s20")
    k(f"v_add_u32 v{vA}, s30, v5")
    k("s_min_u32 s31, s28, 1")
    k("s_lshl_b32 s20, s31, 5")
    k("s_add_u32 s20, s20, 28")
    k("s_sub_u32 s20, s20, s29")
    k("s_mul_i32 s20, s20, 80")
    k(f"s_mul_i32 s30, s27, {UD}")
    k("s_add_u32 s20, s20, s30")
    k(f"s_add_u32 s20, s20, {UB}")
    k("v_and_b32 v5, 31, v0")
    k("v_mul_u32_u24 v5, 80, v5")
    k("v_add3_u32 v5, v5, v6, s20".replace("v5, v5, v6, s20", f"v{vB}, v5, v6, s20"))
    for i in range(16): k(f"v_mov_b32 v{CA+i}, 0")
    k("k2_restart:")
    for a, n in ((O[0],32),(P[1],8),(VB[1],8)):
        for i in range(n): k(f"v_mov_b32 v{a+i}, 0")
    k("s_mov_b32 s16, 0")
    k("s_cmp_eq_u32 s17, 8")
    k("s_cbranch_scc0 k2_nosig")
    k("s_waitcnt vmcnt(10)")
    k("s_lshl_b32 s20, s27, 2")
    k(f"v_mov_b32 v5, s20")
    k("s_mov_b64 exec, 1")
    k(f"ds_add_u32 v5, v{vOne} offset:{FL}")
    k("s_mov_b64 exec, -1")
    k("k2_nosig:")
    k("s_waitcnt vmcnt(4)")
    k(f"{MFMA} {r16(S[0])}, {r4(KB[0])}, {r4(Q[0])}, 0")
    k(f"{MFMA} {r16(S[0])}, {r4(KB[0]+4)}, {r4(Q[0]+4)}, {r16(S[0])}")
    k("s_nop 7"); k("s_nop 3")

    def creads(j, kk):
        o = 8*(3-j) + 4*kk
        k(f"ds_read2_b64 {r4(FA+4*kk)}, v{vA} offset0:{o} offset1:{o+1}")
        k(f"ds_read_b128 {r4(FB+4*kk)}, v{vB} offset:{80*(3-j)+32*kk}")
    def unit(j, conv):
        odd = j & 1; i1 = j >> 1
        sc, sn = S[odd], S[1-odd]
        pw, pr = P[odd], P[1-odd]
        kb = KB[i1] if not odd else KB[1-i1]
        qn = Q[1-odd]
        vb = VB[1-i1] if not odd else VB[i1]
        o = O[1-odd]
        E = [f"v_exp_f32 v{sc+r}, v{sc+r}" for r in range(16)]
        C = [f"v_cvt_pk_bf16_f32 v{pw+i}, v{sc+2*i}, v{sc+2*i+1}" for i in range(8)]
        QK0 = f"{MFMA} {r16(sn)}, {r4(kb)}, {r4(qn)}, 0"
        QK1 = f"{MFMA} {r16(sn)}, {r4(kb+4)}, {r4(qn+4)}, {r16(sn)}"
        PV0 = f"{MFMA} {r16(o)}, {r4(vb)}, {r4(pr)}, {r16(o)}"
        PV1 = f"{MFMA} {r16(o)}, {r4(vb+4)}, {r4(pr+4)}, {r16(o)}"
        C0 = f"{MFMA} {r16(CA)}, {r4(FA)}, {r4(FB)}, {r16(CA)}"
        C1 = f"{MFMA} {r16(CA)}, {r4(FA+4)}, {r4(FB+4)}, {r16(CA)}"
        def kl():
            if not odd:
                s = 13 if i1 == 0 else 14
                ld(kb, s, 0); ld(kb+4, s, 1024)
        def vl():
            if not odd:
                s = 12 if i1 == 0 else 13
                ld(vb, s, 2048); ld(vb+4, s, 3072)
        if odd: k("s_waitcnt vmcnt(4)")
        if conv:
            k(QK0); k(E[0]); k(E[1]); k(E[2]); k(C[0])
            k("s_waitcnt lgkmcnt(2)")
            k(C0); creads(j, 0); k(E[3]); k(E[4]); k(E[5]); k(C[1])
            k(PV0); k(E[6]); k(E[7]); k(C[2]); k(C[3])
            k(QK1); kl(); k(E[8]); k(E[9]); k(E[10]); k(C[4])
            k("s_waitcnt lgkmcnt(2)")
            k(C1); creads(j, 1); k(E[11]); k(E[12]); k(E[13]); k(C[5])
            k(PV1); vl(); k(E[14]); k(E[15]); k(C[6]); k(C[7])
        else:
            k(QK0); [k(E[r]) for r in range(0,4)]; k(C[0]); k(C[1])
            k(PV0); [k(E[r]) for r in range(4,8)]; k(C[2]); k(C[3])
            k(QK1); kl(); [k(E[r]) for r in range(8,12)]; k(C[4]); k(C[5])
            k(PV1); vl(); [k(E[r]) for r in range(12,16)]; k(C[6]); k(C[7])
    def adv():
        k("s_add_u32 s12, s12, 8192"); k("s_add_u32 s13, s13, 8192"); k("s_add_u32 s14, s14, 8192")
    k("k2_plain:")
    k("s_cmp_eq_u32 s15, 0")
    k("s_cbranch_scc1 k2_plain_done")
    k(".p2align 6")
    k("k2_lp:")
    for j in range(4): unit(j, False)
    adv()
    k("s_sub_u32 s15, s15, 1")
    k("s_cmp_lg_u32 s15, 0")
    k("s_cbranch_scc1 k2_lp")
    k("k2_plain_done:")
    k("s_cmp_eq_u32 s17, 0")
    k("s_cbranch_scc1 k2_tail")
    k("s_lshl_b32 s20, s27, 2")
    k("v_mov_b32 v5, s20")
    poll(k, 5, FL, 2)
    creads(-1, 0); creads(-1, 1)
    k(".p2align 6")
    k("k2_lc:")
    for j in range(4): unit(j, True)
    adv()
    k(f"v_subrev_u32 v{vA}, 256, v{vA}")
    k(f"v_subrev_u32 v{vB}, 320, v{vB}")
    k("s_sub_u32 s17, s17, 1")
    k("s_cmp_lg_u32 s17, 0")
    k("s_cbranch_scc1 k2_lc")
    k("s_mov_b32 s15, s18")
    k("s_waitcnt lgkmcnt(0)")
    k("s_cmp_eq_u32 s28, 0")
    k("s_cbranch_scc1 k2_cstore")
    k("s_mul_i32 s29, s27, 12288")
    k(f"s_add_u32 s29, s29, {PART}")
    k("s_lshl_b32 s20, s28, 12")
    k("s_add_u32 s20, s20, s29")
    k("s_sub_u32 s20, s20, 4096")
    k(f"v_add_u32 v6, s20, v{vL16}")
    for q in range(4): k(f"ds_write_b128 v6, {r4(CA+4*q)} offset:{1024*q}")
    k("s_mov_b64 exec, 1")
    k(f"ds_add_rtn_u32 v7, v5, v{vOne} offset:{FL+8}")
    k("s_mov_b64 exec, -1")
    k("s_waitcnt lgkmcnt(0)")
    k("v_readfirstlane_b32 s20, v7")
    k("s_cmp_eq_u32 s20, 2")
    k("s_cbranch_scc0 k2_plain")
    k(f"v_add_u32 v6, s29, v{vL16}")
    for q in range(4): k(f"ds_read_b128 {r4(CA+4*q)}, v6 offset:{1024*q}")
    for q in range(4): k(f"ds_read_b128 {r4(FA+4*q)}, v6 offset:{4096+1024*q}")
    k("s_waitcnt lgkmcnt(0)")
    for r in range(16): k(f"v_add_f32 v{CA+r}, v{CA+r}, v{FA+r}")
    for q in range(4): k(f"ds_read_b128 {r4(FA+4*q)}, v6 offset:{8192+1024*q}")
    k("s_waitcnt lgkmcnt(0)")
    for r in range(16): k(f"v_add_f32 v{CA+r}, v{CA+r}, v{FA+r}")
    k("k2_cstore:")
    for i in range(8): k(f"v_cvt_pk_bf16_f32 v{FA+i}, v{CA+2*i}, v{CA+2*i+1}")
    k("v_and_b32 v6, 31, v0")
    k("v_lshlrev_b32 v6, 6, v6")
    k("v_lshrrev_b32 v7, 5, v0")
    k("v_lshl_add_u32 v6, v7, 4, v6")
    k("s_lshl_b32 s20, s21, 12")
    k("s_lshl_b32 s29, s31, 11")
    k("s_add_u32 s20, s20, s29")
    k(f"s_add_u32 s20, s20, {WS_YT}")
    for a in (0, 1, 4, 5): k(f"v_permlane32_swap_b32 v{FA+a}, v{FA+a+2}")
    k(f"buffer_store_dwordx4 {r4(FA)}, v6, s[8:11], s20 offen")
    k(f"buffer_store_dwordx4 {r4(FA+4)}, v6, s[8:11], s20 offen offset:32")
    k("s_branch k2_plain")
    k("k2_tail:")
    k(f"{MFMA} {r16(O[1])}, {r4(VB[1])}, {r4(P[1])}, {r16(O[1])}")
    k(f"{MFMA} {r16(O[1])}, {r4(VB[1]+4)}, {r4(P[1]+4)}, {r16(O[1])}")
    k("v_and_b32 v5, 31, v0")
    k("v_lshlrev_b32 v5, 4, v5")
    k("s_lshl_b32 s20, s6, 10")
    k(f"s_add_u32 s20, s20, {LP}")
    k("v_add_u32 v5, s20, v5")
    k("s_lshl_b32 s20, s7, 2")
    k("v_add_u32 v6, s20, v5")
    k("s_mul_i32 s20, s6, 24576")
    k(f"s_add_u32 s20, s20, {CB}")
    k(f"v_add_u32 v7, s20, v{vL16}")
    k("s_lshl_b32 s29, s19, 4")
    k("s_lshl_b32 s20, s6, 2")
    k("s_add_u32 s20, s20, s29")
    k(f"v_mov_b32 v10, s20")
    k("s_lshr_b32 s20, s7, 1")
    k("s_add_u32 s29, s26, s20")
    k("s_mul_i32 s29, s29, 28672")
    k(f"s_add_u32 s29, s29, {WS_OF}")
    k("s_and_b32 s20, s7, 1")
    k("s_lshl_b32 s20, s20, 2")
    k("s_mul_i32 s30, s4, 7")
    k("s_add_u32 s20, s20, s30")
    k("v_lshrrev_b32 v11, 5, v0")
    k("v_add_u32 v11, s20, v11")
    k(f"v_and_b32 v{FA}, 31, v0")
    k(f"v_lshlrev_b32 v{FA}, 4, v{FA}")
    k(f"v_and_b32 v{FA+1}, 1, v11")
    k(f"v_lshl_add_u32 v{FA}, v{FA+1}, 3, v{FA}")
    k(f"v_lshrrev_b32 v11, 1, v11")
    k(f"v_lshl_add_u32 v{FA}, v11, 9, v{FA}")
    k("s_mov_b32 exec_lo, 0")
    k(f"ds_write_b32 v6, v{O[0]+12}")
    k("s_mov_b32 exec_lo, -1")
    for q in range(1,4):
        k(f"s_cmp_eq_u32 s7, {q}")
        k(f"s_cbranch_scc1 k2_cmb{q}")
    T0 = S[0]
    LR = P[0]
    for q in range(4):
        k(f"k2_cmb{q}:")
        order = [o for o in range(4) if o != q]
        first = True
        for o in order:
            if o >= 2 and first:
                k("s_mov_b32 exec_lo, 0")
                k(f"ds_write_b32 v6, v{O[1]+12} offset:512")
                k("s_mov_b32 exec_lo, -1")
                first = False
            j = q if q < o else q-1
            src = O[o>>1] + 8*(o&1)
            k(f"ds_write_b128 v7, {r4(src)} offset:{o*6144+j*2048}")
            k(f"ds_write_b128 v7, {r4(src+4)} offset:{o*6144+j*2048+1024}")
        k("s_mov_b64 exec, 1")
        k(f"ds_add_u32 v10, v{vOne} offset:{FL+16}")
        k("s_mov_b64 exec, -1")
        poll(k, 10, FL+16, 4)
        k(f"ds_read_b128 {r4(LR)}, v5")
        k(f"ds_read_b128 {r4(LR+4)}, v5 offset:512")
        for j in range(3):
            for hf in range(2):
                k(f"ds_read_b128 {r4(T0+8*j+4*hf)}, v7 offset:{q*6144+j*2048+hf*1024}")
        k("s_waitcnt lgkmcnt(6)")
        for t in range(2):
            b = LR+4*t
            k(f"v_add_f32 v{b}, v{b}, v{b+1}")
            k(f"v_add_f32 v{b+2}, v{b+2}, v{b+3}")
            k(f"v_add_f32 v{b}, v{b}, v{b+2}")
        k(f"v_rcp_f32 v{LR+1}, v{LR+4*(q>>1)}")
        k(f"v_min_f32 v{LR+2}, v{LR}, v{LR+4}")
        k(f"v_add_f32 v{LR+5}, v{LR}, v{LR+4}")
        k(f"s_mov_b32 s20, {hex(f2u(2.0**-40))}")
        k(f"v_cmp_le_f32 vcc, s20, v{LR+2}")
        k(f"s_mov_b32 s20, {hex(f2u(2.0**40))}")
        k(f"v_cmp_ge_f32 s[30:31], s20, v{LR+5}")
        k("s_and_b64 vcc, vcc, s[30:31]")
        k("s_cmp_eq_u64 vcc, -1")
        k("s_cselect_b32 s20, 1, s19")
        k("s_cmp_eq_u32 s20, 0")
        k("s_cbranch_scc1 k2_fallback")
        own = O[q>>1] + 8*(q&1)
        for j in range(3):
            k(f"s_waitcnt lgkmcnt({4-2*j})")
            for r in range(8): k(f"v_add_f32 v{own+r}, v{own+r}, v{T0+8*j+r}")
        for r in range(8): k(f"v_mul_f32 v{own+r}, v{own+r}, v{LR+1}")
        for i in range(4): k(f"v_cvt_pk_bf16_f32 v{T0+i}, v{own+2*i}, v{own+2*i+1}")
        k(f"buffer_store_dwordx2 v[{T0}:{T0+1}], v{FA}, s[8:11], s29 offen")
        if q & 1: k("s_mov_b32 exec_hi, 0")
        k(f"buffer_store_dwordx2 v[{T0+2}:{T0+3}], v{FA}, s[8:11], s29 offen offset:512")
        k("s_endpgm")
    k("k2_fallback:")
    k("s_waitcnt vmcnt(0) lgkmcnt(0)")
    M0_, M1_ = P[0], P[0]+1
    k(f"v_mov_b32 v{M0_}, 0xff800000"); k(f"v_mov_b32 v{M1_}, 0xff800000")
    k("s_mov_b32 s12, s23")
    k("s_mov_b32 s15, 16")
    k("k2_fb_lp:")
    ld(KB[0], 12, 0); ld(KB[0]+4, 12, 1024)
    k("s_waitcnt vmcnt(0)")
    for t in range(2):
        k(f"{MFMA} {r16(S[t])}, {r4(KB[0])}, {r4(Q[t])}, 0")
        k(f"{MFMA} {r16(S[t])}, {r4(KB[0]+4)}, {r4(Q[t]+4)}, {r16(S[t])}")
    for t in range(2):
        for r in range(0,16,2): k(f"v_max3_f32 v{M0_+t}, v{M0_+t}, v{S[t]+r}, v{S[t]+r+1}")
    k("s_add_u32 s12, s12, 4096")
    k("s_sub_u32 s15, s15, 1")
    k("s_cmp_lg_u32 s15, 0")
    k("s_cbranch_scc1 k2_fb_lp")
    for t in range(2):
        k(f"v_mov_b32 v{M0_+2}, v{M0_+t}")
        k(f"v_permlane32_swap_b32 v{M0_+t}, v{M0_+2}")
        k(f"v_max_f32 v{M0_+t}, v{M0_+t}, v{M0_+2}")
        k(f"ds_write_b32 v6, v{M0_+t} offset:{MP-LP+512*t}")
    k("s_mov_b64 exec, 1")
    k(f"ds_add_u32 v10, v{vOne} offset:{FL+24}")
    k("s_mov_b64 exec, -1")
    poll(k, 10, FL+24, 4)
    k(f"ds_read_b128 {r4(T0)}, v5 offset:{MP-LP}")
    k(f"ds_read_b128 {r4(T0+4)}, v5 offset:{MP-LP+512}")
    k("s_waitcnt lgkmcnt(0)")
    k("s_mov_b32 exec_lo, 0")
    for t in range(2):
        b = T0+4*t
        k(f"v_max3_f32 v{b}, v{b}, v{b+1}, v{b+2}")
        k(f"v_max_f32 v{b}, v{b}, v{b+3}")
        k(f"v_sub_f32 v{b}, 0, v{b}")
        k(f"v_and_b32 v{b+1}, 0xffff0000, v{b}")
        k(f"v_sub_f32 v{b}, v{b}, v{b+1}")
        k(f"v_and_b32 v{b+2}, 0xffff0000, v{b}")
        k(f"v_sub_f32 v{b}, v{b}, v{b+2}")
        k(f"v_lshrrev_b32 v{Q[t]+7}, 16, v{b}")
        k(f"v_lshrrev_b32 v{b+1}, 16, v{b+1}")
        k(f"v_or_b32 v{Q[t]+6}, v{b+1}, v{b+2}")
    k("s_mov_b32 exec_lo, -1")
    k("s_mov_b32 s19, 1")
    k("s_mov_b32 s15, 8"); k("s_mov_b32 s17, 0"); k("s_mov_b32 s18, 0")
    kvloads()
    k("s_branch k2_restart")
    k("k2_end:")
    k("s_endpgm")
    return k, NV, LDS2
```

```python
from dsl import *
from common import *

OFL = 0
WOL = 57344
YI = WOL + 57344
ST = YI + 8192
LDS3 = ST + 8*2560
def r4(a): return f"v[{a}:{a+3}]"
def r16(a): return f"v[{a}:{a+15}]"

def gen_k3():
    k = K("k3_kernel")
    k("s_cmp_ge_u32 s2, 224")
    k("s_cbranch_scc1 k3_end")
    k("s_load_dwordx2 s[24:25], s[0:1], 16")
    k("s_load_dwordx2 s[26:27], s[0:1], 96")
    k("s_load_dwordx2 s[28:29], s[0:1], 112")
    k("v_lshrrev_b32 v1, 6, v0")
    k("v_and_b32 v0, 63, v0")
    k("v_readfirstlane_b32 s3, v1")
    k("v_lshlrev_b32 v1, 4, v0")
    k("s_and_b32 s4, s2, 7")
    k("s_lshr_b32 s5, s2, 3")
    k("s_mul_i32 s6, s5, 37")
    k("s_lshr_b32 s6, s6, 8")
    k("s_mul_i32 s7, s6, 7")
    k("s_sub_u32 s5, s5, s7")
    k("s_lshl_b32 s4, s4, 2")
    k("s_add_u32 s4, s4, s6")
    k("v_lshrrev_b32 v2, 3, v0")
    k("v_mul_u32_u24 v2, 896, v2")
    k("v_bfe_u32 v3, v0, 4, 1")
    k("v_lshlrev_b32 v3, 2, v3")
    k("v_and_b32 v4, 7, v0")
    k("v_xor_b32 v3, v3, v4")
    k("v_lshl_add_u32 v2, v3, 4, v2")
    k("s_mul_i32 s30, s3, 7168")
    k("s_lshl_b32 s20, s5, 7")
    k("s_add_u32 s30, s30, s20")
    k("s_lshl_b32 s31, s3, 10")
    k(f"s_add_u32 s31, s31, {WOL}")
    k("s_lshr_b32 s20, s3, 2")
    k("s_mul_i32 s33, s20, 28672")
    k("s_and_b32 s21, s3, 3")
    k("s_lshl_b32 s21, s21, 10")
    k("s_add_u32 s33, s33, s21")
    k("s_mul_i32 s32, s4, 57344")
    k("s_add_u32 s32, s32, s33")
    k(f"s_add_u32 s32, s32, {WS_OF}")
    k("s_and_b32 s34, s3, 1")
    k("s_bfe_u32 s35, s3, 0x10001")
    k("s_lshl_b32 s36, s4, 1")
    k("s_add_u32 s36, s36, s34")
    k("s_lshl_b32 s37, s5, 1")
    k("s_add_u32 s37, s37, s35")
    k("s_mul_i32 s38, s36, 57344")
    k("s_lshl_b32 s20, s37, 6")
    k("s_add_u32 s38, s38, s20")
    k("s_add_u32 s39, s38, 28672")
    k("v_lshrrev_b32 v5, 2, v0")
    k("v_and_b32 v6, 3, v0")
    k("v_lshlrev_b32 v6, 4, v6")
    k("v_mul_u32_u24 v7, 1792, v5")
    k("v_add_u32 v7, v7, v6")
    k("s_mul_i32 s20, s3, 2560")
    k(f"s_add_u32 s20, s20, {ST}")
    k("v_mul_u32_u24 v8, 80, v5")
    k("v_add3_u32 v8, v8, v6, s20")
    k("v_and_b32 v9, 31, v0")
    k("v_mul_u32_u24 v9, 80, v9")
    k("v_lshrrev_b32 v10, 5, v0")
    k("v_lshl_add_u32 v9, v10, 4, v9")
    k("v_add_u32 v9, s20, v9")
    k("s_waitcnt lgkmcnt(0)")
    srd(k, 8, 28, WS_SIZE)
    srd(k, 12, 24, 401408)
    srd(k, 16, 26, 2048*1792)
    def chunks():
        for c in range(7):
            k(f"s_add_u32 m0, s33, {c*4096}")
            k(f"s_add_u32 s20, s32, {c*4096}")
            k("buffer_load_dwordx4 v1, s[8:11], s20 offen lds")
            k(f"s_add_u32 m0, s31, {c*8192}")
            k(f"s_add_u32 s20, s30, {c*64*896}")
            k("buffer_load_dwordx4 v2, s[12:15], s20 offen lds")
    F = 32
    def epi(off):
        k(f"ds_write_b128 v9, {r4(F)}")
        k(f"ds_write_b128 v9, {r4(F+4)} offset:32")
        k(f"ds_read_b128 {r4(F+8)}, v8")
        k(f"ds_read_b128 {r4(F+12)}, v8 offset:1280")
        k("s_waitcnt lgkmcnt(1)")
        k(f"buffer_store_dwordx4 {r4(F+8)}, v7, s[16:19], s38 offen offset:{off}")
        k("s_waitcnt lgkmcnt(0)")
        k(f"buffer_store_dwordx4 {r4(F+12)}, v7, s[16:19], s39 offen offset:{off}")
    k("s_cmp_ge_u32 s3, 4")
    k("s_cbranch_scc1 k3_y")
    chunks()
    k("v_bfe_u32 v11, v0, 2, 2")
    k("v_lshl_add_u32 v11, v10, 3, v11")
    k("v_lshlrev_b32 v11, 7, v11")
    k("v_bfe_u32 v12, v0, 1, 1")
    k("v_bfe_u32 v13, v0, 4, 1")
    k("v_lshl_add_u32 v12, v13, 1, v12")
    k("v_bfe_u32 v13, v0, 3, 1")
    k("v_xor_b32 v13, s35, v13")
    k("v_lshl_add_u32 v12, v13, 2, v12")
    k("v_lshl_add_u32 v11, v12, 4, v11")
    k("v_and_b32 v12, 1, v0")
    k("v_lshl_add_u32 v11, v12, 3, v11")
    k(f"v_add_u32 v11, {WOL}, v11")
    k("s_mul_i32 s20, s34, 28672")
    k("v_add_u32 v12, s20, v1")
    ACC = 16; B0 = 48
    for c in range(7):
        k(f"s_waitcnt vmcnt({2*(6-c)})")
        k("s_barrier")
        for i in range(4):
            ks = 4*c+i; b = B0+8*i
            k(f"ds_read_b128 {r4(b)}, v12 offset:{ks*1024}")
            k(f"ds_read_b64_tr_b16 v[{b+4}:{b+5}], v11 offset:{ks*2048}")
            k(f"ds_read_b64_tr_b16 v[{b+6}:{b+7}], v11 offset:{ks*2048+512}")
        for i in range(4):
            b = B0+8*i
            k(f"s_waitcnt lgkmcnt({3*(3-i)})")
            k(f"{MFMA} {r16(ACC)}, {r4(b+4)}, {r4(b)}, {'0' if c==0 and i==0 else r16(ACC)}")
    for i in range(8): k(f"v_cvt_pk_bf16_f32 v{F+i}, v{ACC+2*i}, v{ACC+2*i+1}")
    for a in (0, 1, 4, 5): k(f"v_permlane32_swap_b32 v{F+a}, v{F+a+2}")
    epi(0)
    k("s_endpgm")
    k("k3_y:")
    k("v_lshlrev_b32 v11, 12, v5")
    k("v_add_u32 v11, v11, v6")
    k("s_lshl_b32 s20, s37, 17")
    k("s_lshl_b32 s21, s36, 6")
    k("s_add_u32 s20, s20, s21")
    k(f"s_add_u32 s20, s20, {WS_YT}")
    k("s_lshl_b32 s22, s3, 11")
    k(f"s_add_u32 s22, s22, {YI-8192}")
    k("s_mov_b32 m0, s22")
    k("s_add_u32 s21, s20, 65536")
    k("buffer_load_dwordx4 v11, s[8:11], s20 offen lds")
    k("s_add_u32 m0, s22, 1024")
    k("s_nop 0")
    k("buffer_load_dwordx4 v11, s[8:11], s21 offen lds")
    chunks()
    k("v_bfe_u32 v11, v0, 2, 2")
    k("v_lshlrev_b32 v11, 6, v11")
    k("v_lshl_add_u32 v11, v10, 9, v11")
    k("v_and_b32 v12, 3, v0")
    k("v_lshl_add_u32 v11, v12, 3, v11")
    k("v_bfe_u32 v12, v0, 4, 1")
    k("v_lshl_add_u32 v11, v12, 5, v11")
    k("v_add_u32 v11, s22, v11")
    k("s_waitcnt vmcnt(14)")
    for kk in range(2):
        for hf in range(2):
            k(f"ds_read_b64_tr_b16 v[{F+4*kk+2*hf}:{F+4*kk+2*hf+1}], v11 offset:{kk*1024+hf*256}")
    k("s_waitcnt lgkmcnt(0)")
    epi(896)
    for c in range(7):
        k(f"s_waitcnt vmcnt({2*(6-c)+2})")
        k("s_barrier")
    k("k3_end:")
    k("s_endpgm")
    return k, 80, LDS3
```

```python
import sys, importlib
sys.path.insert(0, 'gen')
NAME = "concat_heads__mha_block__ssm_conv_s4__prompt"
HDR = open(f'cdna_kernels/{NAME}.s.ref').read().split('; Override launch')[0]
def build(kernels, path):
    s = HDR
    for k, vg, lds, grid, block in kernels:
        s += f"; @launch kernel={k.name} grid=({grid},1,1) block=({block},1,1) lds={lds}\n"
    s += '.amdgcn_target "amdgcn-amd-amdhsa--gfx950"\n.text\n'
    for k, vg, lds, grid, block in kernels:
        t, n = k.text(vg)
        s += t
        print(k.name, "nops inserted:", n, "lines:", t.count('\n'), "lds", lds, file=sys.stderr)
    s += '.section .rodata,"a"\n'
    for k, vg, lds, grid, block in kernels:
        acc = (vg+3)//4*4
        s += f""".p2align 6
.amdhsa_kernel {k.name}
  .amdhsa_next_free_vgpr {vg}
  .amdhsa_next_free_sgpr 102
  .amdhsa_accum_offset {acc}
  .amdhsa_group_segment_fixed_size 0
  .amdhsa_kernarg_size 120
  .amdhsa_user_sgpr_count 2
  .amdhsa_user_sgpr_kernarg_segment_ptr 1
  .amdhsa_system_sgpr_workgroup_id_x 1
.end_amdhsa_kernel
"""
    open(path,'w').write(s)
if __name__ == "__main__":
    from k1 import gen_k1
    ks = []
    k, vg, lds = gen_k1(); ks.append((k, vg, lds, 224, 512))
    try:
        from k2 import gen_k2
        k, vg, lds = gen_k2(); ks.append((k, vg, lds, 256, 512))
        from k3 import gen_k3
        k, vg, lds = gen_k3(); ks.append((k, vg, lds, 224, 512))
    except ImportError as e: print("partial build", e)
    build(ks, sys.argv[1] if len(sys.argv)>1 else f'cdna_kernels/{NAME}.s')
```

```python
import sys
sys.path.insert(0,'gen')
from build import build
from dsl import K
from k1 import gen_k1
from k2 import gen_k2
from k3 import gen_k3
def empty(name):
    k = K(name); k("s_endpgm"); return k
def base():
    ks=[]
    k, vg, lds = gen_k1(); ks.append((k, vg, lds, 256, 512))
    k, vg, lds = gen_k2(); ks.append((k, vg, lds, 256, 512))
    k, vg, lds = gen_k3(); ks.append((k, vg, lds, 224, 512))
    return ks
build(base(), 'vA.s')
build(base()+[(empty('e1_kernel'),8,0,1,64)], 'vB.s')
build(base()+[(empty('e1_kernel'),8,0,1,64),(empty('e2_kernel'),8,0,1,64),(empty('e3_kernel'),8,0,1,64)], 'vC.s')
build([(empty('e1_kernel'),8,0,256,512)]+base(), 'vD.s')
```

```python
import re

TRANS = ("v_exp_f32","v_log_f32","v_rcp_f32","v_rsq_f32","v_sqrt_f32","v_sin_f32","v_cos_f32")

def regs_of(tok):
    tok = tok.strip()
    neg = tok.startswith('-')
    if neg: tok = tok[1:]
    tok = tok.strip('|')
    m = re.fullmatch(r'([vsa])\[(\d+):(\d+)\]', tok)
    if m: return {(m.group(1), i) for i in range(int(m.group(2)), int(m.group(3))+1)}
    m = re.fullmatch(r'([vsa])(\d+)', tok)
    if m: return {(m.group(1), int(m.group(2)))}
    if tok == 'vcc': return {('s','vcc_lo'),('s','vcc_hi')}
    if tok in ('vcc_lo','vcc_hi'): return {('s',tok)}
    if tok == 'm0': return {('s','m0')}
    if tok == 'exec': return {('s','exec_lo'),('s','exec_hi')}
    if tok in ('exec_lo','exec_hi'): return {('s',tok)}
    return set()

class I:
    def __init__(self, text):
        self.text = text
        t = text.split(';')[0].strip()
        self.label = None
        self.isinst = True
        if not t or t.startswith('.') :
            self.isinst = False; self.op=''; return
        if t.endswith(':'):
            self.label = t[:-1]; self.isinst = False; self.op=''; return
        parts = t.split(None, 1)
        self.op = op = parts[0]
        rest = parts[1] if len(parts) > 1 else ''
        ops = []; cur=''; depth=0
        for ch in rest:
            if ch=='[': depth+=1
            if ch==']': depth-=1
            if ch==',' and depth==0: ops.append(cur); cur=''
            else: cur+=ch
        if cur.strip(): ops.append(cur)
        mods = ''
        if ops:
            l = ops[-1].strip().split(None,1)
            ops[-1] = l[0]
            mods = l[1] if len(l)>1 else ''
        ops = [o.strip() for o in ops]
        self.ops = ops; self.mods = mods
        self.mfma = op.startswith('v_mfma')
        self.valu = op.startswith('v_') and not self.mfma
        self.trans = op.replace('_e32','').replace('_e64','') in TRANS
        self.salu = op.startswith('s_')
        self.ds = op.startswith('ds_')
        self.vmem = op.startswith('buffer_') or op.startswith('global_')
        self.dpp = 'quad_perm' in mods or 'row_' in mods or 'wave_' in mods or op.endswith('_dpp')
        self.ldsdma = self.vmem and re.search(r'\blds\b', mods) is not None
        self.dst=set(); self.src=set(); self.srcC=set(); self.srcAB=set(); self.sdata=set()
        self.nstates = 1
        if op == 's_nop': self.nstates = int(ops[0])+1
        R = [regs_of(o) for o in ops]
        if self.mfma:
            self.dst=R[0]; self.srcAB=R[1]|R[2]; self.srcC=R[3]; self.src=self.srcAB|self.srcC
            self.passes = 8 if '32x32x16' in op else 4
        elif self.valu:
            if op.startswith('v_cmp'):
                self.dst=R[0]; self.src=set().union(*R[1:])
            elif op.startswith('v_permlane32_swap') or op.startswith('v_permlane16_swap') or op.startswith('v_swap'):
                self.dst=R[0]|R[1]; self.src=R[0]|R[1]
            elif op.startswith('v_add_co') or op.startswith('v_sub_co') or op.startswith('v_addc_co'):
                self.dst=R[0]|R[1]; self.src=set().union(*R[2:])
            else:
                self.dst=R[0]; self.src=set().union(*R[1:]) if len(R)>1 else set()
                if op.startswith('v_fmac') or op.startswith('v_pk_fmac') or op.startswith('v_writelane') or self.dpp: self.src |= R[0]
                if op.startswith('v_cndmask') and len(ops)==3: self.src |= regs_of('vcc')
        elif self.ds:
            if op.startswith('ds_read') :
                self.dst=R[0]; self.src=set().union(*R[1:])
            else:
                self.src=set().union(*R)
        elif self.vmem:
            if '_load' in op and not self.ldsdma:
                self.dst=R[0]; self.src=set().union(*R[1:])
            elif '_store' in op:
                self.src=set().union(*R)
                if op.startswith('buffer_'): self.sdata=R[0]
                else: self.sdata=R[1]
            else:
                self.src=set().union(*R)
            if self.ldsdma: self.src |= {('s','m0')}
        elif self.salu:
            if op.startswith('s_cmp') or op.startswith('s_cbranch') or op in ('s_branch','s_waitcnt','s_nop','s_barrier','s_endpgm','s_setprio','s_sleep'):
                self.src=set().union(*R) if R else set()
            else:
                self.dst=R[0] if R else set(); self.src=set().union(*R[1:]) if len(R)>1 else set()
                if 'saveexec' in op: self.dst |= regs_of('exec')
        self.wide_store = self.vmem and '_store' in op and (op.endswith('x4') or op.endswith('x3'))

def V(s): return {r for r in s if r[0] in ('v','a')}
def S(s): return {r for r in s if r[0]=='s'}

def need(p, c):
    n = 0
    if p.valu:
        vd = V(p.dst); sd = S(p.dst)
        if c.mfma and vd & c.src: n=max(n,2)
        if c.valu:
            if p.trans and not c.trans and vd & c.src: n=max(n,1)
            if c.op.startswith('v_permlane') and vd & c.src: n=max(n,2)
            if (c.op.startswith('v_readlane') or c.op.startswith('v_readfirstlane')) and vd & c.src: n=max(n,1)
            if c.dpp and vd & c.src: n=max(n,2)
            if sd & c.src:
                n=max(n,2)
                if c.op.startswith('v_readlane') or c.op.startswith('v_writelane'): n=max(n,4)
            if ('sdwa' in p.op or 'dst_sel' in p.mods) and vd & (c.src|c.dst): n=max(n,1)
        if c.vmem and sd & c.src: n=max(n,5)
    if p.mfma:
        big = 12 if p.passes==8 else 8
        d = p.dst
        if c.valu and d & (c.src|c.dst): n=max(n,big)
        if (c.vmem or c.ds) and d & (c.src|c.dst): n=max(n,big)
        if c.mfma:
            if d & c.srcAB: n=max(n,big)
            if d & c.srcC and not (d == c.srcC and p.passes==c.passes): n=max(n, 10 if p.passes==8 else 6)
        if c.valu and p.srcC & c.dst: n=max(n, 7 if p.passes==8 else 3)
    if p.salu and ('s','m0') in p.dst and (c.ldsdma or 'addtid' in c.op): n=max(n,1)
    if p.wide_store and p.sdata & c.dst:
        n=max(n, 2 if c.valu else 1)
    return n

def fix_hazards(lines):
    ins = [I(l) for l in lines]
    out = []
    nins = 0
    for c in ins:
        if c.isinst:
            dist = 0; req = 0
            for p in reversed(out):
                if not p.isinst: continue
                if p.op in ('s_branch','s_endpgm'): break
                r = need(p, c)
                if r - dist > req: req = r - dist
                dist += p.nstates
                if dist >= 20: break
            if req > 0:
                out.append(I(f"    s_nop {req-1}   ; hazard")); nins += 1
        out.append(c)
    labels = {x.label:i for i,x in enumerate(out) if x.label}
    for i,b in enumerate(out):
        if b.isinst and (b.op.startswith('s_cbranch') or b.op=='s_branch'):
            tgt = labels[b.ops[0]]
            before = [x for x in out[max(0,i-60):i+1] if x.isinst][-20:]
            after = []
            for x in out[tgt:tgt+60]:
                if x.isinst:
                    after.append(x)
                    if x.op in ('s_branch','s_endpgm'): break
            after = after[:20]
            d0 = 0
            for ci,c in enumerate(after):
                dist = d0
                for p in reversed(before):
                    r = need(p,c)
                    if r > dist:
                        raise Exception(f"branch-edge hazard: '{p.text.strip()}' -> '{c.text.strip()}' need {r} have {dist} (branch {b.text.strip()})")
                    dist += p.nstates
                    if dist>=20: break
                d0 += c.nstates
    return [x.text for x in out], nins

import os
STAMP = int(os.environ.get('STAMP','0'))
class K:
    def __init__(self, name):
        self.name=name; self.L=[]; self.uid=0; self.kidx=None
    def stamp_init(self, kidx, wsreg, wavereg='s3'):
        if not STAMP: return
        self.kidx=kidx; self.wsreg=wsreg
        self("s_memrealtime s[70:71]")
        self(f"s_mov_b32 s69, {wavereg}")
        for i in range(1,16): self(f"s_mov_b64 s[{70+2*i}:{71+2*i}], 0")
        self("s_memtime s[96:97]")
    def stamp(self, i):
        if not STAMP: return
        self(f"s_memrealtime s[{70+2*i}:{71+2*i}]")
    def end(self):
        if STAMP and self.kidx is not None:
            self("s_waitcnt vmcnt(0) lgkmcnt(0)")
            self("s_memrealtime s[100:101]")
            self("s_memtime s[98:99]")
            self("s_mov_b64 exec, -1")
            self("v_mbcnt_lo_u32_b32 v1, -1, 0")
            self("v_mbcnt_hi_u32_b32 v1, -1, v1")
            self("v_lshlrev_b32 v1, 2, v1")
            self("s_lshl_b32 s68, s2, 3")
            self("s_add_u32 s68, s68, s69")
            self("s_lshl_b32 s68, s68, 6")
            self(f"s_add_u32 s68, s68, {(14<<20) + self.kidx*(256*8*64)}")
            self("v_add_u32 v1, s68, v1")
            self("v_mov_b32 v0, 0")
            self("s_waitcnt lgkmcnt(0)")
            for i in range(16): self(f"v_writelane_b32 v0, s{70+2*i}, {i}")
            self("s_mov_b64 exec, 0xffff")
            self(f"global_store_dword v1, v0, s[{self.wsreg}:{self.wsreg+1}]")
        self("s_endpgm")
    def __call__(self, s):
        for l in s.split('\n'):
            l=l.rstrip()
            if not l.strip(): continue
            if l.strip().endswith(':'): self.L.append(l.strip())
            else: self.L.append('    '+l.strip())
    def lab(self, base):
        self.uid+=1; return f"{self.name}_{base}_{self.uid}"
    def text(self, vgpr, sgpr=102):
        body, n = fix_hazards(self.L)
        hdr = f".globl {self.name}\n.p2align 8\n.type {self.name},@function\n{self.name}:\n"
        return hdr + "\n".join(body) + "\n", n

def vr(a, n=1):
    return f"v{a}" if n==1 else f"v[{a}:{a+n-1}]"
def sr(a, n=1):
    return f"s{a}" if n==1 else f"s[{a}:{a+n-1}]"
```

```python
from dsl import *
from common import *

L_W = 0
L_X = 86016
NSLOT = 3
L_KB = L_X + 4*NSLOT*4096
L_FL = L_KB + 4*4096
LDS1 = L_FL + 64

def signal(k, vfl, vone, idx):
    k("s_mov_b64 exec, 1")
    k(f"ds_add_u32 v{vfl}, v{vone} offset:{4*idx}")
    k("s_mov_b64 exec, -1")
def poll(k, vfl, vt, idx, n):
    L = k.lab("poll")
    k(f"{L}:")
    k(f"ds_read_b32 v{vt}, v{vfl} offset:{4*idx}")
    k("s_waitcnt lgkmcnt(0)")
    k(f"v_readfirstlane_b32 s20, v{vt}")
    k(f"s_cmp_lt_u32 s20, {n}")
    k(f"s_cbranch_scc1 {L}")

def gen_k1(PK=True):
    k = K("k1_kernel")
    k("s_cmp_ge_u32 s2, 256")
    k("s_cbranch_scc1 k1_end")
    k("s_load_dwordx16 s[36:51], s[0:1], 0")
    k("s_load_dwordx8 s[52:59], s[0:1], 64")
    k("s_load_dwordx2 s[60:61], s[0:1], 112")
    k("v_lshrrev_b32 v1, 6, v0")
    k("v_and_b32 v0, 63, v0")
    k("v_readfirstlane_b32 s3, v1")
    k.stamp_init(0, 60)
    k("s_and_b32 s6, s2, 7")
    k("s_lshr_b32 s7, s2, 3")
    k("s_and_b32 s4, s6, 1")
    k("s_lshl_b32 s4, s4, 3")
    k("s_lshr_b32 s20, s7, 2")
    k("s_add_u32 s4, s4, s20")
    k("s_lshr_b32 s5, s6, 1")
    k("s_lshl_b32 s5, s5, 2")
    k("s_and_b32 s20, s7, 3")
    k("s_add_u32 s5, s5, s20")
    k("s_cmp_ge_u32 s3, 4")
    k("s_cbranch_scc1 k1_kgen")
    vW, vX0, vX1 = 2, 3, 4
    k(f"v_lshrrev_b32 v{vW}, 2, v0")
    k(f"v_mul_u32_u24 v{vW}, 2688, v{vW}")
    k("v_and_b32 v5, 3, v0")
    k(f"v_lshl_add_u32 v{vW}, v5, 4, v{vW}")
    k("v_lshrrev_b32 v5, 3, v0")
    k("v_mul_u32_u24 v5, 896, v5")
    k("v_lshrrev_b32 v6, 4, v0")
    k("v_and_b32 v7, 7, v0")
    k("v_xor_b32 v6, v6, v7")
    k(f"v_lshl_add_u32 v{vX0}, v6, 4, v5")
    k("v_xor_b32 v6, 4, v6")
    k(f"v_lshl_add_u32 v{vX1}, v6, 4, v5")
    k("s_mul_i32 s21, s3, 43008")
    k("s_mul_i32 s20, s4, 56")
    k("s_add_u32 s21, s21, s20")
    k("s_lshl_b32 s22, s3, 10")
    k("s_lshl_b32 s23, s5, 2")
    k("s_add_u32 s23, s23, s3")
    k("s_mul_i32 s24, s23, 28672")
    k(f"s_mul_i32 s25, s3, {NSLOT*4096}")
    k(f"s_add_u32 s25, s25, {L_X}")
    k("s_waitcnt lgkmcnt(0)")
    k.stamp(1)
    k.diag_start(0, 60)
    srd(k, 8, 36, 1835008)
    srd(k, 12, 38, 1204224)
    srd(k, 16, 60, WS_SIZE)
    issued = []
    def dmaW(s):
        for m in range(3):
            k(f"s_add_u32 m0, s22, {L_W + m*28672 + s*4096}")
            k(f"s_add_u32 s20, s21, {s*64*2688 + m*896}")
            k(f"buffer_load_dwordx4 v{vW}, s[12:15], s20 offen lds")
            issued.append(('W',s))
    def dmaX(s):
        for i in range(4):
            k(f"s_add_u32 m0, s25, {(s%NSLOT)*4096 + i*1024}")
            k(f"s_add_u32 s20, s24, {i*8*896 + s*128}")
            k(f"buffer_load_dwordx4 v{vX1 if i&1 else vX0}, s[8:11], s20 offen lds")
            issued.append(('X',s))
    for s in range(7):
        dmaW(s)
        if s < NSLOT: dmaX(s)
    vXr = [8,9,10,11]; vT, vT2, vFl, vOne, vTmp = 12, 13, 14, 15, 5
    k("v_and_b32 v5, 31, v0")
    k("v_lshrrev_b32 v6, 5, v0")
    k("v_bfe_u32 v7, v0, 1, 3")
    k("v_xor_b32 v6, v6, v7")
    k("v_lshlrev_b32 v5, 7, v5")
    k("v_add_u32 v5, s25, v5")
    for ks in range(4):
        k(f"v_xor_b32 v7, {2*ks}, v6")
        k(f"v_lshl_add_u32 v{vXr[ks]}, v7, 4, v5")
    k("v_bfe_u32 v5, v0, 2, 2")
    k(f"v_lshlrev_b32 v{vT}, 6, v5")
    k("v_and_b32 v5, 3, v0")
    k(f"v_lshl_add_u32 v{vT}, v5, 3, v{vT}")
    k("v_bfe_u32 v5, v0, 4, 1")
    k(f"v_lshl_add_u32 v{vT}, v5, 5, v{vT}")
    k("v_lshrrev_b32 v5, 5, v0")
    k(f"v_lshl_add_u32 v{vT}, v5, 9, v{vT}")
    k(f"v_add_u32 v{vT2}, {L_W+57344}, v{vT}")
    k(f"v_mov_b32 v{vFl}, {L_FL}")
    k(f"v_mov_b32 v{vOne}, 1")
    k.stamp(2)
    k("s_barrier")
    k.stamp(3)
    DQ, DK, DV = 16, 32, 48
    FB = [64, 80]
    def reads(ksg):
        s, ks = ksg//4, ksg%4
        b = FB[ksg&1]
        k(f"ds_read_b128 v[{b}:{b+3}], v{vXr[ks]} offset:{(s%NSLOT)*4096}")
        for m in range(3):
            for hf in range(2):
                if m < 2: a, off = vT, L_W + m*28672 + ksg*1024 + hf*256
                else: a, off = vT2, ksg*1024 + hf*256
                r = b+4+4*m+2*hf
                k(f"ds_read_b64_tr_b16 v[{r}:{r+1}], v{a} offset:{off}")
    def mfmas(ksg):
        b = FB[ksg&1]
        x = f"v[{b}:{b+3}]"
        c = lambda D: "0" if ksg==0 else f"v[{D}:{D+15}]"
        k(f"{MFMA} v[{DQ}:{DQ+15}], v[{b+4}:{b+7}], {x}, {c(DQ)}")
        k(f"{MFMA} v[{DK}:{DK+15}], v[{b+8}:{b+11}], {x}, {c(DK)}")
        k(f"{MFMA} v[{DV}:{DV+15}], {x}, v[{b+12}:{b+15}], {c(DV)}")
    def vmwait(tags):
        last = max(i for i,t in enumerate(issued) if t in tags)
        k(f"s_waitcnt vmcnt({len(issued)-1-last})")
    for s in range(7):
        if s > 0:
            k("s_waitcnt lgkmcnt(0)")
            mfmas(4*s-1)
            if s-1+NSLOT < 7: dmaX(s-1+NSLOT)
        if s < NSLOT:
            vmwait([('W',s),('X',s)]); signal(k, vFl, vOne, s); poll(k, vFl, vTmp, s, 4)
        elif s == NSLOT:
            vmwait([('W',6),('X',s)]); signal(k, vFl, vOne, s); poll(k, vFl, vTmp, s, 4)
        else:
            vmwait([('X',s)])
        k.stamp(4+s)
        reads(4*s)
        for ks in range(1,4):
            reads(4*s+ks)
            k("s_waitcnt lgkmcnt(7)")
            mfmas(4*s+ks-1)
    k("s_waitcnt lgkmcnt(0)")
    mfmas(27)
    k.stamp(11)
    k(f"s_mov_b32 s26, {hex(f2u(28**-0.5*LOG2E))}")
    k("s_lshl_b32 s27, s4, 6")
    k("s_add_u32 s27, s27, s23")
    k("s_lshl_b32 s28, s27, 11")
    k("s_lshl_b32 s29, s27, 12")
    k(f"s_add_u32 s29, s29, {WS_KV}")
    k("v_lshlrev_b32 v1, 4, v0")
    PQ, PK_, PV = 64, 72, 80
    for r in range(16): k(f"v_mul_f32 v{DQ+r}, s26, v{DQ+r}")
    for i in range(8): k(f"v_cvt_pk_bf16_f32 v{PQ+i}, v{DQ+2*i}, v{DQ+2*i+1}")
    for i in range(8): k(f"v_cvt_pk_bf16_f32 v{PK_+i}, v{DK+2*i}, v{DK+2*i+1}")
    for i in range(8): k(f"v_cvt_pk_bf16_f32 v{PV+i}, v{DV+2*i}, v{DV+2*i+1}")
    k("s_mov_b32 exec_lo, 0")
    k(f"v_mov_b32 v{PQ+6}, 0")
    k(f"v_mov_b32 v{PQ+7}, 0")
    k(f"v_mov_b32 v{PK_+6}, 0x3f803f80")
    k(f"v_mov_b32 v{PK_+7}, 0x00003f80")
    k("s_mov_b32 exec_lo, 0x10000000")
    k("s_mov_b32 exec_hi, 0x10000000")
    for i in range(8): k(f"v_mov_b32 v{PV+i}, 0x3f803f80")
    k("s_mov_b32 exec_lo, 0xe0000000")
    k("s_mov_b32 exec_hi, 0xe0000000")
    for i in range(8): k(f"v_mov_b32 v{PV+i}, 0")
    k("s_mov_b64 exec, -1")
    k(f"buffer_store_dwordx4 v[{PQ}:{PQ+3}], v1, s[16:19], s28 offen")
    k(f"buffer_store_dwordx4 v[{PQ+4}:{PQ+7}], v1, s[16:19], s28 offen offset:1024")
    k(f"buffer_store_dwordx4 v[{PK_}:{PK_+3}], v1, s[16:19], s29 offen")
    k(f"buffer_store_dwordx4 v[{PK_+4}:{PK_+7}], v1, s[16:19], s29 offen offset:1024")
    k(f"buffer_store_dwordx4 v[{PV}:{PV+3}], v1, s[16:19], s29 offen offset:2048")
    k(f"buffer_store_dwordx4 v[{PV+4}:{PV+7}], v1, s[16:19], s29 offen offset:3072")
    k.end()

    k("k1_kgen:")
    k("s_sub_u32 s3, s3, 4")
    k("v_lshlrev_b32 v1, 2, v0")
    k("v_and_b32 v2, 60, v1")
    k(f"v_add_u32 v2, {L_FL}, v2")
    k("v_mov_b32 v3, 0")
    k("ds_write_b32 v2, v3")
    k("s_cmp_ge_u32 s2, 224")
    k("s_cbranch_scc1 k1_kidle")
    k("s_and_b32 s21, s3, 1")
    k("s_lshl_b32 s22, s2, 1")
    k("s_add_u32 s22, s22, s21")
    k("s_lshr_b32 s23, s3, 1")
    k("s_lshl_b32 s24, s22, 9")
    k("s_lshl_b32 s20, s23, 8")
    k("s_add_u32 s24, s24, s20")
    k("v_add_u32 v1, s24, v1")
    k("s_lshl_b32 s25, s2, 2")
    k("s_lshl_b32 s26, s2, 2")
    k("s_add_u32 s26, s26, s3")
    k("s_mul_i32 s27, s26, 4682")
    k("s_lshr_b32 s27, s27, 16")
    k("s_mul_i32 s20, s27, 14")
    k("s_sub_u32 s28, s26, s20")
    k("s_lshl_b32 s29, s3, 12")
    k(f"s_add_u32 s29, s29, {L_KB}")
    k("v_lshrrev_b32 v8, 2, v0")
    k("v_mul_u32_u24 v8, 896, v8")
    k("v_and_b32 v9, 3, v0")
    k("v_lshl_add_u32 v8, v9, 4, v8")
    k("s_mul_i32 s30, s27, 28672")
    k("s_lshl_b32 s20, s28, 6")
    k("s_add_u32 s30, s30, s20")
    k("s_waitcnt lgkmcnt(0)")
    k.stamp(1)
    k("s_load_dword s62, s[56:57], s25")
    k("s_load_dword s63, s[58:59], s25")
    for j,b in enumerate((44,46,48,50,52,54)):
        k(f"global_load_dword v{2+j}, v1, s[{b}:{b+1}]")
    srd(k, 8, 42, 1835008)
    srd(k, 16, 60, WS_SIZE)
    k("s_mov_b32 m0, s29")
    k("s_add_u32 s31, s30, 14336")
    k("buffer_load_dwordx4 v8, s[8:11], s30 offen lds")
    k("s_add_u32 m0, s29, 1024")
    k("s_nop 0")
    k("buffer_load_dwordx4 v8, s[8:11], s31 offen lds")
    vT0, vT1 = 8, 9
    vWa = [10,11,12,13]
    vU = 46
    k("v_bfe_u32 v14, v0, 2, 2")
    k("v_lshrrev_b32 v15, 5, v0")
    k("v_lshlrev_b32 v16, 6, v14")
    k("v_lshl_add_u32 v16, v15, 9, v16")
    k("v_add_u32 v16, s29, v16")
    k("v_and_b32 v17, 1, v0")
    k("v_lshl_add_u32 v16, v17, 3, v16")
    k("v_bfe_u32 v17, v0, 1, 1")
    k("v_bfe_u32 v18, v0, 4, 1")
    k("v_lshl_add_u32 v17, v18, 1, v17")
    k(f"v_lshl_add_u32 v{vU}, v17, 4, v16")
    k("v_bfe_u32 v18, v0, 3, 1")
    k("v_xor_b32 v17, v17, v18")
    k(f"v_lshl_add_u32 v{vT0}, v17, 4, v16")
    k("v_xor_b32 v17, 2, v17")
    k(f"v_lshl_add_u32 v{vT1}, v17, 4, v16")
    k(f"v_add_u32 v{vT1}, 256, v{vT1}")
    k("v_lshlrev_b32 v16, 6, v0")
    k("v_add_u32 v16, s29, v16")
    k("v_bfe_u32 v17, v0, 1, 2")
    for c in range(4):
        k(f"v_xor_b32 v18, {c}, v17")
        k(f"v_lshl_add_u32 v{vWa[c]}, v18, 4, v16")
    k("s_waitcnt lgkmcnt(0)")
    k.stamp(2)
    k("s_barrier")
    k.stamp(3)
    k("s_lshl_b32 s21, s21, 4")
    k("s_lshr_b32 s62, s62, s21")
    k("s_lshl_b32 s62, s62, 16")
    k("s_lshr_b32 s63, s63, s21")
    k("s_lshl_b32 s63, s63, 16")
    k(f"v_mov_b32 v14, {hex(f2u(LOG2E))}")
    k("v_mul_f32 v14, s62, v14")
    k("v_exp_f32 v14, v14")
    k("v_cvt_pk_bf16_f32 v14, v14, v14")
    k("v_and_b32 v14, 0xffff0000, v14")
    k("v_readfirstlane_b32 s64, v14")
    k("s_waitcnt vmcnt(0)")
    k.stamp(4)
    UF = 160
    for kk in range(2):
        for hf in range(2):
            k(f"ds_read_b64_tr_b16 v[{UF+4*kk+2*hf}:{UF+4*kk+2*hf+1}], v{vU} offset:{kk*1024+hf*256}")
    k("v_and_b32 v44, 31, v0")
    k("v_lshlrev_b32 v44, 12, v44")
    k("v_lshrrev_b32 v45, 5, v0")
    k("v_lshl_add_u32 v44, v45, 4, v44")
    k("s_lshl_b32 s30, s28, 17")
    k("s_lshl_b32 s20, s27, 6")
    k("s_add_u32 s30, s30, s20")
    k(f"s_add_u32 s30, s30, {WS_UT}")
    Z1, Z8, Z256, W, Z2, Z4 = 14, 16, 18, 20, 22, 24
    PR, PI = 48, 64
    LRE, LIM, HRE, HIM, ACC = 80, 96, 112, 128, 144
    def cmul(d, a, b):
        if PK:
            k(f"v_pk_mul_f32 v[{d}:{d+1}], v[{a}:{a+1}], v[{b}:{b+1}] op_sel:[0,0] op_sel_hi:[1,0]")
            k(f"v_pk_fma_f32 v[{d}:{d+1}], v[{a}:{a+1}], v[{b}:{b+1}], v[{d}:{d+1}] op_sel:[1,1,0] op_sel_hi:[0,1,1] neg_lo:[1,0,0]")
        else:
            k(f"v_mul_f32 v{d}, v{a}, v{b}")
            k(f"v_mul_f32 v{d+1}, v{a+1}, v{b}")
            k(f"v_fma_f32 v{d}, -v{a+1}, v{b+1}, v{d}")
            k(f"v_fmac_f32 v{d+1}, v{a}, v{b+1}")
    def prep(j):
        for q in range(6):
            if j == 0: k(f"v_lshlrev_b32 v{26+q}, 16, v{2+q}")
            else: k(f"v_and_b32 v{26+q}, 0xffff0000, v{2+q}")
        k("v_mul_f32 v26, s64, v26")
        k("v_mul_f32 v27, s64, v27")
        k("v_mul_f32 v28, s64, v28")
        k("v_mul_f32 v29, s64, v29")
        k(f"v_mul_f32 v26, {hex(f2u(LOG2E))}, v26")
        k(f"v_mul_f32 v27, {hex(f2u(1/(2*math.pi)))}, v27")
        cmul(W, 30, 28)
        for z, sc in ((Z1,1.0),(Z8,8.0),(Z256,256.0)):
            if sc == 1.0:
                k("v_exp_f32 v32, v26"); k("v_fract_f32 v33, v27")
            else:
                k(f"v_mul_f32 v32, {hex(f2u(sc))}, v26")
                k(f"v_mul_f32 v33, {hex(f2u(sc))}, v27")
                k("v_exp_f32 v32, v32"); k("v_fract_f32 v33, v33")
            k(f"v_cos_f32 v{z}, v33")
            k(f"v_sin_f32 v{z+1}, v33")
            k(f"v_mul_f32 v{z}, v32, v{z}")
            k(f"v_mul_f32 v{z+1}, v32, v{z+1}")
    def plane(P, F, nch):
        for c in range(nch):
            k(f"ds_write_b128 v{vWa[c]}, v[{P+4*c}:{P+4*c+3}]")
        for ks in range(4):
            k(f"ds_read_b64_tr_b16 v[{F+4*ks}:{F+4*ks+1}], v{vT0} offset:{ks*1024}")
            k(f"ds_read_b64_tr_b16 v[{F+4*ks+2}:{F+4*ks+3}], v{vT1} offset:{ks*1024}")
    T = [34, 36, 38, 40]
    def Lchain():
        k(f"v_cvt_pk_bf16_f32 v{PR}, 1.0, v{Z8}")
        k(f"v_cvt_pk_bf16_f32 v{PI}, 0, v{Z8+1}")
        prev = Z8
        for j in range(1,16):
            a, b = T[(2*j)%4], T[(2*j+1)%4]
            cmul(a, prev, Z8); cmul(b, a, Z8)
            k(f"v_cvt_pk_bf16_f32 v{PR+j}, v{a}, v{b}")
            k(f"v_cvt_pk_bf16_f32 v{PI+j}, v{a+1}, v{b+1}")
            prev = b
        plane(PR, LRE, 4); plane(PI, LIM, 4)
    def pack(j, a, b):
        k(f"v_cvt_pk_bf16_f32 v{PR+j}, v{a}, v{b}")
        k(f"v_cvt_pk_bf16_f32 v{PI+j}, -v{a+1}, -v{b+1}")
    def Hchain():
        A,B,C,D = T
        cmul(Z2, Z1, Z1); cmul(Z4, Z2, Z2)
        cmul(A, W, Z1); pack(0, W, A)
        cmul(B, A, Z1); cmul(C, B, Z1); pack(1, B, C)
        cmul(D, C, Z1); cmul(A, D, Z1); pack(2, D, A)
        cmul(B, A, Z1); cmul(C, B, Z1); pack(3, B, C)
        G = 42
        cmul(G, W, Z256); cmul(A, G, Z2); pack(4, G, A)
        cmul(B, A, Z2); cmul(C, B, Z2); pack(5, B, C)
        cmul(D, G, Z256); cmul(A, D, Z4); pack(6, D, A)
        cmul(G, D, Z256); cmul(A, G, Z4); pack(7, G, A)
        cmul(B, G, Z256); cmul(C, B, Z256); pack(8, B, C)
        cmul(D, C, Z256); cmul(A, D, Z256); pack(9, D, A)
        cmul(B, A, Z256); pack(10, B, B)
        plane(PR, HRE, 3); plane(PI, HIM, 3)
    def kmf(first):
        k("s_waitcnt lgkmcnt(0)")
        for ks in range(4):
            c = "0" if (first and ks==0) else f"v[{ACC}:{ACC+15}]"
            k(f"{MFMA} v[{ACC}:{ACC+15}], v[{HRE+4*ks}:{HRE+4*ks+3}], v[{LRE+4*ks}:{LRE+4*ks+3}], {c}")
            k(f"{MFMA} v[{ACC}:{ACC+15}], v[{HIM+4*ks}:{HIM+4*ks+3}], v[{LIM+4*ks}:{LIM+4*ks+3}], v[{ACC}:{ACC+15}]")
    prep(0)
    k("s_waitcnt lgkmcnt(0)")
    k(f"buffer_store_dwordx4 v[{UF}:{UF+3}], v44, s[16:19], s30 offen")
    k(f"buffer_store_dwordx4 v[{UF+4}:{UF+7}], v44, s[16:19], s30 offen offset:32")
    k.stamp(5); Lchain(); k.stamp(6); Hchain(); prep(1); k.stamp(7); kmf(True); Lchain(); Hchain(); k.stamp(8)
    k("v_and_b32 v26, 31, v0")
    k("v_lshrrev_b32 v27, 5, v0")
    k("v_lshlrev_b32 v28, 5, v26")
    k("v_lshl_add_u32 v28, v27, 4, v28")
    k("v_add_u32 v28, s29, v28")
    k("v_lshlrev_b32 v29, 4, v26")
    k("v_add_u32 v29, 1024, v29")
    k("v_add_u32 v30, 8, v29")
    k("s_mov_b32 exec_lo, 0")
    k("v_lshlrev_b32 v29, 3, v26")
    k("v_add_u32 v29, 1536, v29")
    k("v_add_u32 v30, 256, v29")
    k("s_mov_b32 exec_lo, -1")
    k("v_add_u32 v29, s29, v29")
    k("v_add_u32 v30, s29, v30")
    k("v_lshlrev_b32 v31, 2, v26")
    k("v_lshl_add_u32 v31, v27, 9, v31")
    k("v_add_u32 v31, s29, v31")
    k(f"v_mov_b32 v32, {L_FL+16}")
    k("s_and_b32 s20, s3, 1")
    k("s_lshl_b32 s20, s20, 2")
    k("v_add_u32 v32, s20, v32")
    k("v_mov_b32 v33, 1")
    kmf(False)
    k(f"ds_write_b128 v28, v[{ACC}:{ACC+3}]")
    k(f"ds_write_b64 v29, v[{ACC+4}:{ACC+5}]")
    k(f"ds_write_b64 v30, v[{ACC+6}:{ACC+7}]")
    for i in range(4): k(f"ds_write_b32 v31, v{ACC+8+i} offset:{2048+128*i}")
    signal(k, 32, 33, 0)
    k.stamp(9)
    k("s_and_b32 s20, s3, 1")
    k("s_lshl_b32 s20, s20, 12")
    k(f"s_add_u32 s31, s20, {L_KB}")
    k(f"s_mul_i32 s30, s22, {KR_STRIDE}")
    k(f"s_add_u32 s30, s30, {WS_KR}")
    k("v_lshlrev_b32 v34, 4, v0")
    k("v_sub_u32 v34, 4080, v34")
    k("v_lshlrev_b32 v35, 2, v0")
    k("v_add_u32 v35, s31, v35")
    k("v_and_b32 v36, 1, v0")
    k("v_cmp_eq_u32 s[66:67], 1, v36")
    poll(k, 32, 26, 0, 2)
    k.stamp(10)
    k("s_cmp_eq_u32 s23, 1")
    k("s_cbranch_scc1 k1_exp1")
    def t4(i, R):
        off = 512 + 64*(i-2)
        k(f"v_add_u32 v37, {off*4}, v35")
        k(f"ds_read2_b32 v[{R}:{R+1}], v37 offset0:0 offset1:1")
        k(f"v_add_u32 v37, 8192, v37")
        k(f"ds_read2_b32 v[{R+2}:{R+3}], v37 offset0:0 offset1:1")
    def t4fin(i, R, O):
        k(f"v_add_f32 v{R}, v{R}, v{R+2}")
        k(f"v_add_f32 v{R+1}, v{R+1}, v{R+3}")
        k(f"v_cndmask_b32 v{R+2}, v{R}, v{R+1}, s[66:67]")
        k(f"v_cvt_pk_bf16_f32 v{O}, v{R+1}, v{R+1}")
        k(f"v_cvt_pk_bf16_f32 v{O+1}, v{R+1}, v{R+2}")
        k(f"v_cvt_pk_bf16_f32 v{O+2}, v{R}, v{R}")
        k(f"v_cvt_pk_bf16_f32 v{O+3}, v{R}, v{R}")
        k(f"s_sub_u32 s20, s30, {1024*i}")
        k(f"buffer_store_dwordx4 v[{O}:{O+3}], v34, s[16:19], s20 offen")
    k("v_lshlrev_b32 v38, 5, v0")
    k("s_mov_b32 exec_lo, 0")
    k("v_lshlrev_b32 v38, 4, v0")
    k("v_add_u32 v38, 512, v38")
    k("s_mov_b32 exec_lo, -1")
    k("v_add_u32 v38, s31, v38")
    k("ds_read_b128 v[48:51], v38")
    k("ds_read_b128 v[52:55], v38 offset:16")
    k("ds_read_b128 v[56:59], v38 offset:8192")
    k("ds_read_b128 v[60:63], v38 offset:8208")
    t4(2, 64)
    k("s_waitcnt lgkmcnt(0)")
    for e in range(8): k(f"v_add_f32 v{48+e}, v{48+e}, v{56+e}")
    k("s_mov_b32 exec_lo, 0")
    pat = [0,0,1,2,2,2,3,4]
    for e in range(7,0,-1): k(f"v_mov_b32 v{48+e}, v{48+pat[e]}")
    k("s_mov_b64 exec, 1")
    k("v_add_f32 v48, s63, v48")
    k("s_mov_b64 exec, -1")
    for i in range(4): k(f"v_cvt_pk_bf16_f32 v{56+i}, v{55-2*i}, v{54-2*i}")
    k("buffer_store_dwordx4 v[56:59], v34, s[16:19], s30 offen")
    t4fin(2, 64, 68)
    k.end()
    k("k1_exp1:")
    k("v_lshlrev_b32 v38, 3, v0")
    k("v_add_u32 v38, s31, v38")
    k("ds_read_b64 v[48:49], v38 offset:1536")
    k("ds_read_b32 v50, v38 offset:1544")
    k(f"ds_read_b64 v[52:53], v38 offset:{1536+8192}")
    k(f"ds_read_b32 v54, v38 offset:{1544+8192}")
    t4(3, 64)
    for i in range(4): k(f"v_mov_b32 v{72+i}, 0")
    k("v_lshlrev_b32 v39, 4, v0")
    k("s_add_u32 s21, s30, 4096")
    k("s_mov_b64 exec, 0xff")
    k("buffer_store_dwordx4 v[72:75], v39, s[16:19], s21 offen")
    k("s_mov_b64 exec, -1")
    k("s_waitcnt lgkmcnt(0)")
    for e in range(3): k(f"v_add_f32 v{48+e}, v{48+e}, v{52+e}")
    k("v_cvt_pk_bf16_f32 v56, v50, v50")
    k("v_cvt_pk_bf16_f32 v57, v49, v49")
    k("v_cvt_pk_bf16_f32 v58, v49, v48")
    k("v_cvt_pk_bf16_f32 v59, v48, v48")
    k("s_sub_u32 s20, s30, 1024")
    k("buffer_store_dwordx4 v[56:59], v34, s[16:19], s20 offen")
    t4fin(3, 64, 68)
    k.end()
    k("k1_kidle:")
    k("s_waitcnt lgkmcnt(0)")
    k("s_barrier")
    k.end()
    k("k1_end:")
    k("s_endpgm")
    return k, 168, LDS1
```

```python
from dsl import *
from common import *

FL = 0
LP = 256
MP = LP + 2048
RB = MP + 2048
RD = 4*4160
UB = RB + 2*RD
UD = 96*80
PART = UB + 2*UD
CB = PART + 6*4096
LDS2 = CB + 49152

vL16, vFl, vOne, vT = 1, 2, 3, 4
vA, vB = 8, 9
Q = [12, 20]; KB = [28, 36]; VB = [44, 52]; S = [60, 76]; P = [92, 100]; O = [108, 124]
CA, FA, FB = 140, 156, 164
NV = 172

def signal(k, idx_off):
    k("s_mov_b64 exec, 1")
    k(f"ds_add_u32 v{vFl}, v{vOne} offset:{idx_off}")
    k("s_mov_b64 exec, -1")
def poll(k, vaddr, off, n):
    L = k.lab("poll")
    k(f"{L}:")
    k(f"ds_read_b32 v{vT}, v{vaddr} offset:{off}")
    k("s_waitcnt lgkmcnt(0)")
    k(f"v_readfirstlane_b32 s20, v{vT}")
    k(f"s_cmp_lt_u32 s20, {n}")
    k(f"s_cbranch_scc1 {L}")

def r4(a): return f"v[{a}:{a+3}]"
def r16(a): return f"v[{a}:{a+15}]"

def gen_k2(N1=2):
    k = K("k2_kernel")
    k("s_cmp_ge_u32 s2, 256")
    k("s_cbranch_scc1 k2_end")
    k("s_load_dwordx2 s[24:25], s[0:1], 112")
    k("v_lshrrev_b32 v1, 6, v0")
    k("v_and_b32 v0, 63, v0")
    k("v_readfirstlane_b32 s3, v1")
    k.stamp_init(1, 24)
    k(f"v_lshlrev_b32 v{vL16}, 4, v0")
    k("s_and_b32 s4, s2, 7")
    k("s_lshl_b32 s4, s4, 1")
    k("s_lshr_b32 s5, s2, 3")
    k("s_lshr_b32 s20, s5, 4")
    k("s_add_u32 s4, s4, s20")
    k("s_and_b32 s5, s5, 15")
    k("s_lshr_b32 s6, s3, 2")
    k("s_and_b32 s7, s3, 3")
    k("s_lshl_b32 s26, s5, 2")
    k("s_lshl_b32 s20, s6, 1")
    k("s_add_u32 s26, s26, s20")
    k("s_lshl_b32 s20, s4, 6")
    k("s_add_u32 s22, s20, s26")
    k("s_lshl_b32 s22, s22, 11")
    k("s_lshl_b32 s23, s7, 4")
    k("s_add_u32 s23, s23, s20")
    k("s_lshl_b32 s23, s23, 12")
    k(f"s_add_u32 s23, s23, {WS_KV}")
    k("s_and_b32 s27, s3, 1")
    k("s_lshr_b32 s28, s3, 1")
    k("s_lshl_b32 s21, s2, 1")
    k("s_add_u32 s21, s21, s27")
    k("s_mov_b32 s19, 0")
    k(f"s_mul_i32 s20, s27, {UD}")
    k("s_mul_i32 s29, s28, 640")
    k("s_add_u32 s20, s20, s29")
    k(f"s_add_u32 s20, s20, {UB}")
    k(f"v_add_u32 v5, s20, v{vL16}")
    k("s_mul_i32 s20, s3, 4160")
    k(f"s_add_u32 s20, s20, {RB+4096-640}")
    k("s_mov_b32 exec_lo, 0")
    k("s_mov_b32 exec_hi, 0x0f00")
    k(f"v_add_u32 v5, s20, v{vL16}")
    k("s_mov_b32 exec_hi, 0xf000")
    k(f"v_add_u32 v5, {FL-704}, v{vL16}")
    k("s_mov_b64 exec, -1")
    for i in range(4): k(f"v_mov_b32 v{FA+i}, 0")
    k("s_mov_b32 exec_hi, 0xffff")
    k(f"ds_write_b128 v5, {r4(FA)}")
    k("s_mov_b64 exec, -1")
    k(f"v_mov_b32 v{vFl}, {FL}")
    k(f"v_mov_b32 v{vOne}, 1")
    k("s_waitcnt lgkmcnt(0)")
    k.stamp(1)
    k.diag_start(1, 24)
    srd(k, 8, 24, WS_SIZE)
    def ld(dst, s, off): k(f"buffer_load_dwordx4 {r4(dst)}, v{vL16}, s[8:11], s{s} offen" + (f" offset:{off}" if off else ""))
    def kvloads():
        k("s_add_u32 s12, s23, 4096")
        k("s_add_u32 s13, s23, 8192")
        k("s_add_u32 s14, s23, 12288")
        ld(KB[0], 23, 0); ld(KB[0]+4, 23, 1024)
        ld(KB[1], 12, 0); ld(KB[1]+4, 12, 1024)
        ld(VB[0], 23, 2048); ld(VB[0]+4, 23, 3072)
    def qloads():
        for i in range(4): ld(Q[0]+4*i, 22, 1024*i)
    k("s_mov_b32 s15, 8"); k("s_mov_b32 s17, 0"); k("s_mov_b32 s18, 0")
    k("s_cmp_ge_u32 s3, 4")
    k("s_cbranch_scc0 k2_heavy")
    qloads(); kvloads()
    k("s_barrier")
    k("s_cmp_ge_u32 s2, 224")
    k("s_cbranch_scc1 k2_start")
    k(f"s_mov_b32 s15, {N1}"); k("s_mov_b32 s17, 4"); k(f"s_mov_b32 s18, {4-N1}")
    k("s_branch k2_start")
    k("k2_heavy:")
    k("s_barrier")
    k("s_cmp_ge_u32 s2, 224")
    k("s_cbranch_scc1 k2_heavy_noconv")
    k("s_mov_b32 s15, 0"); k("s_mov_b32 s17, 8")
    k(f"s_mul_i32 s29, s21, {KR_STRIDE}")
    k(f"s_add_u32 s29, s29, {WS_KR}")
    k("s_lshl_b32 s20, s28, 2")
    k("s_add_u32 s29, s29, s20")
    k(f"s_mul_i32 s30, s27, {RD}")
    k("s_mul_i32 s20, s28, 8320")
    k("s_add_u32 s30, s30, s20")
    k(f"s_add_u32 s30, s30, {RB}")
    for c in range(2):
        for i in range(4):
            k(f"s_add_u32 m0, s30, {c*4160+i*1024}")
            k(f"s_add_u32 s20, s29, {2*c+i*1024}")
            k(f"buffer_load_dwordx4 v{vL16}, s[8:11], s20 offen lds")
    k("s_lshl_b32 s29, s21, 12")
    k(f"s_add_u32 s29, s29, {WS_UT}")
    k(f"s_mul_i32 s30, s27, {UD}")
    k("s_lshl_b32 s20, s28, 11")
    k("s_add_u32 s30, s30, s20")
    k(f"s_add_u32 s30, s30, {UB+2560}")
    k("s_lshl_b32 s31, s28, 7")
    for i in range(3):
        k(f"v_add_u32 v5, s31, v0")
        if i: k(f"v_add_u32 v5, {64*i}, v5")
        k("v_mul_u32_u24 v6, 52429, v5")
        k("v_lshrrev_b32 v6, 18, v6")
        k("v_mul_u32_u24 v7, 5, v6")
        k("v_sub_u32 v5, v5, v7")
        k("v_min_u32 v5, 3, v5")
        k("v_lshlrev_b32 v5, 4, v5")
        k(f"v_lshl_add_u32 v{FB+i}, v6, 6, v5")
        k(f"s_add_u32 m0, s30, {i*1024}")
        k("s_nop 0")
        k(f"buffer_load_dwordx4 v{FB+i}, s[8:11], s29 offen lds")
    k("k2_heavy_noconv:")
    qloads(); kvloads()
    k("k2_start:")
    k.stamp(2)
    k("v_and_b32 v5, 3, v0")
    k("v_sub_u32 v5, 3, v5")
    k("v_mul_u32_u24 v5, 4160, v5")
    k("v_bfe_u32 v6, v0, 2, 3")
    k("v_lshlrev_b32 v6, 3, v6")
    k("v_sub_u32 v5, v5, v6")
    k("v_lshrrev_b32 v6, 5, v0")
    k("v_lshlrev_b32 v6, 4, v6")
    k("v_add_u32 v5, v5, v6")
    k("s_max_u32 s29, s28, 1")
    k("s_sub_u32 s29, s29, 1")
    k("s_lshl_b32 s29, s29, 4")
    k("s_cmp_ge_u32 s28, 2")
    k("s_cselect_b32 s20, 16, 0")
    k("s_add_u32 s29, s29, s20")
    k(f"s_mul_i32 s30, s27, {RD}")
    k(f"s_add_u32 s30, s30, {RB+4088-256}")
    k("s_lshl_b32 s20, s29, 6")
    k("s_sub_u32 s30, s30, s20")
    k(f"v_add_u32 v{vA}, s30, v5")
    k("s_min_u32 s31, s28, 1")
    k("s_lshl_b32 s20, s31, 5")
    k("s_add_u32 s20, s20, 28")
    k("s_sub_u32 s20, s20, s29")
    k("s_mul_i32 s20, s20, 80")
    k(f"s_mul_i32 s30, s27, {UD}")
    k("s_add_u32 s20, s20, s30")
    k(f"s_add_u32 s20, s20, {UB}")
    k("v_and_b32 v5, 31, v0")
    k("v_mul_u32_u24 v5, 80, v5")
    k("v_add3_u32 v5, v5, v6, s20".replace("v5, v5, v6, s20", f"v{vB}, v5, v6, s20"))
    for i in range(16): k(f"v_mov_b32 v{CA+i}, 0")
    k("k2_restart:")
    for a, n in ((O[0],32),(P[1],8),(VB[1],8)):
        for i in range(n): k(f"v_mov_b32 v{a+i}, 0")
    k("s_mov_b32 s16, 0")
    k("s_cmp_eq_u32 s17, 8")
    k("s_cbranch_scc0 k2_nosig")
    k("s_waitcnt vmcnt(10)")
    k("s_lshl_b32 s20, s27, 2")
    k(f"v_mov_b32 v5, s20")
    k("s_mov_b64 exec, 1")
    k(f"ds_add_u32 v5, v{vOne} offset:{FL}")
    k("s_mov_b64 exec, -1")
    k("k2_nosig:")
    k.stamp(3)
    k("s_waitcnt vmcnt(4)")
    k.stamp(4)
    k(f"{MFMA} {r16(S[0])}, {r4(KB[0])}, {r4(Q[0])}, 0")
    k(f"{MFMA} {r16(S[0])}, {r4(KB[0]+4)}, {r4(Q[0]+4)}, {r16(S[0])}")
    k("s_nop 7"); k("s_nop 3")

    def creads(j, kk):
        o = 8*(3-j) + 4*kk
        k(f"ds_read2_b64 {r4(FA+4*kk)}, v{vA} offset0:{o} offset1:{o+1}")
        k(f"ds_read_b128 {r4(FB+4*kk)}, v{vB} offset:{80*(3-j)+32*kk}")
    def unit(j, conv):
        odd = j & 1; i1 = j >> 1
        sc, sn = S[odd], S[1-odd]
        pw, pr = P[odd], P[1-odd]
        kb = KB[i1] if not odd else KB[1-i1]
        qn = Q[1-odd]
        vb = VB[1-i1] if not odd else VB[i1]
        o = O[1-odd]
        E = [f"v_exp_f32 v{sc+r}, v{sc+r}" for r in range(16)]
        C = [f"v_cvt_pk_bf16_f32 v{pw+i}, v{sc+2*i}, v{sc+2*i+1}" for i in range(8)]
        QK0 = f"{MFMA} {r16(sn)}, {r4(kb)}, {r4(qn)}, 0"
        QK1 = f"{MFMA} {r16(sn)}, {r4(kb+4)}, {r4(qn+4)}, {r16(sn)}"
        PV0 = f"{MFMA} {r16(o)}, {r4(vb)}, {r4(pr)}, {r16(o)}"
        PV1 = f"{MFMA} {r16(o)}, {r4(vb+4)}, {r4(pr+4)}, {r16(o)}"
        C0 = f"{MFMA} {r16(CA)}, {r4(FA)}, {r4(FB)}, {r16(CA)}"
        C1 = f"{MFMA} {r16(CA)}, {r4(FA+4)}, {r4(FB+4)}, {r16(CA)}"
        def kl():
            if not odd:
                s = 13 if i1 == 0 else 14
                ld(kb, s, 0); ld(kb+4, s, 1024)
        def vl():
            if not odd:
                s = 12 if i1 == 0 else 13
                ld(vb, s, 2048); ld(vb+4, s, 3072)
        if odd: k("s_waitcnt vmcnt(4)")
        if conv:
            k(QK0); k(E[0]); k(E[1]); k(E[2]); k(C[0])
            k("s_waitcnt lgkmcnt(2)")
            k(C0); creads(j, 0); k(E[3]); k(E[4]); k(E[5]); k(C[1])
            k(PV0); k(E[6]); k(E[7]); k(C[2]); k(C[3])
            k(QK1); kl(); k(E[8]); k(E[9]); k(E[10]); k(C[4])
            k("s_waitcnt lgkmcnt(2)")
            k(C1); creads(j, 1); k(E[11]); k(E[12]); k(E[13]); k(C[5])
            k(PV1); vl(); k(E[14]); k(E[15]); k(C[6]); k(C[7])
        else:
            k(QK0); [k(E[r]) for r in range(0,4)]; k(C[0]); k(C[1])
            k(PV0); [k(E[r]) for r in range(4,8)]; k(C[2]); k(C[3])
            k(QK1); kl(); [k(E[r]) for r in range(8,12)]; k(C[4]); k(C[5])
            k(PV1); vl(); [k(E[r]) for r in range(12,16)]; k(C[6]); k(C[7])
    def adv():
        k("s_add_u32 s12, s12, 8192"); k("s_add_u32 s13, s13, 8192"); k("s_add_u32 s14, s14, 8192")
    k("k2_plain:")
    k("s_cmp_eq_u32 s15, 0")
    k("s_cbranch_scc1 k2_plain_done")
    k(".p2align 6")
    k("k2_lp:")
    for j in range(4): unit(j, False)
    adv()
    k("s_sub_u32 s15, s15, 1")
    k("s_cmp_lg_u32 s15, 0")
    k("s_cbranch_scc1 k2_lp")
    k("k2_plain_done:")
    k("s_cmp_eq_u32 s17, 0")
    k("s_cbranch_scc1 k2_tail")
    k("s_lshl_b32 s20, s27, 2")
    k("v_mov_b32 v5, s20")
    k.stamp(5)
    poll(k, 5, FL, 2)
    k.stamp(6)
    creads(-1, 0); creads(-1, 1)
    k(".p2align 6")
    k("k2_lc:")
    for j in range(4): unit(j, True)
    adv()
    k(f"v_subrev_u32 v{vA}, 256, v{vA}")
    k(f"v_subrev_u32 v{vB}, 320, v{vB}")
    k("s_sub_u32 s17, s17, 1")
    k("s_cmp_lg_u32 s17, 0")
    k("s_cbranch_scc1 k2_lc")
    k.stamp(7)
    k("s_mov_b32 s15, s18")
    k("s_waitcnt lgkmcnt(0)")
    k("s_cmp_eq_u32 s28, 0")
    k("s_cbranch_scc1 k2_cstore")
    k("s_mul_i32 s29, s27, 12288")
    k(f"s_add_u32 s29, s29, {PART}")
    k("s_lshl_b32 s20, s28, 12")
    k("s_add_u32 s20, s20, s29")
    k("s_sub_u32 s20, s20, 4096")
    k(f"v_add_u32 v6, s20, v{vL16}")
    for q in range(4): k(f"ds_write_b128 v6, {r4(CA+4*q)} offset:{1024*q}")
    k("s_mov_b64 exec, 1")
    k(f"ds_add_rtn_u32 v7, v5, v{vOne} offset:{FL+8}")
    k("s_mov_b64 exec, -1")
    k("s_waitcnt lgkmcnt(0)")
    k("v_readfirstlane_b32 s20, v7")
    k("s_cmp_eq_u32 s20, 2")
    k("s_cbranch_scc0 k2_plain")
    k(f"v_add_u32 v6, s29, v{vL16}")
    for q in range(4): k(f"ds_read_b128 {r4(CA+4*q)}, v6 offset:{1024*q}")
    for q in range(4): k(f"ds_read_b128 {r4(FA+4*q)}, v6 offset:{4096+1024*q}")
    k("s_waitcnt lgkmcnt(0)")
    for r in range(16): k(f"v_add_f32 v{CA+r}, v{CA+r}, v{FA+r}")
    for q in range(4): k(f"ds_read_b128 {r4(FA+4*q)}, v6 offset:{8192+1024*q}")
    k("s_waitcnt lgkmcnt(0)")
    for r in range(16): k(f"v_add_f32 v{CA+r}, v{CA+r}, v{FA+r}")
    k("k2_cstore:")
    for i in range(8): k(f"v_cvt_pk_bf16_f32 v{FA+i}, v{CA+2*i}, v{CA+2*i+1}")
    k("v_and_b32 v6, 31, v0")
    k("v_lshlrev_b32 v6, 6, v6")
    k("v_lshrrev_b32 v7, 5, v0")
    k("v_lshl_add_u32 v6, v7, 4, v6")
    k("s_lshl_b32 s20, s21, 12")
    k("s_lshl_b32 s29, s31, 11")
    k("s_add_u32 s20, s20, s29")
    k(f"s_add_u32 s20, s20, {WS_YT}")
    for a in (0, 1, 4, 5): k(f"v_permlane32_swap_b32 v{FA+a}, v{FA+a+2}")
    k(f"buffer_store_dwordx4 {r4(FA)}, v6, s[8:11], s20 offen")
    k(f"buffer_store_dwordx4 {r4(FA+4)}, v6, s[8:11], s20 offen offset:32")
    k("s_branch k2_plain")
    k("k2_tail:")
    k.stamp(8)
    k(f"{MFMA} {r16(O[1])}, {r4(VB[1])}, {r4(P[1])}, {r16(O[1])}")
    k(f"{MFMA} {r16(O[1])}, {r4(VB[1]+4)}, {r4(P[1]+4)}, {r16(O[1])}")
    k("v_and_b32 v5, 31, v0")
    k("v_lshlrev_b32 v5, 4, v5")
    k("s_lshl_b32 s20, s6, 10")
    k(f"s_add_u32 s20, s20, {LP}")
    k("v_add_u32 v5, s20, v5")
    k("s_lshl_b32 s20, s7, 2")
    k("v_add_u32 v6, s20, v5")
    k("s_mul_i32 s20, s6, 24576")
    k(f"s_add_u32 s20, s20, {CB}")
    k(f"v_add_u32 v7, s20, v{vL16}")
    k("s_lshl_b32 s29, s19, 4")
    k("s_lshl_b32 s20, s6, 2")
    k("s_add_u32 s20, s20, s29")
    k(f"v_mov_b32 v10, s20")
    k("s_lshr_b32 s20, s7, 1")
    k("s_add_u32 s29, s26, s20")
    k("s_mul_i32 s29, s29, 28672")
    k(f"s_add_u32 s29, s29, {WS_OF}")
    k("s_and_b32 s20, s7, 1")
    k("s_lshl_b32 s20, s20, 2")
    k("s_mul_i32 s30, s4, 7")
    k("s_add_u32 s20, s20, s30")
    k("v_lshrrev_b32 v11, 5, v0")
    k("v_add_u32 v11, s20, v11")
    k(f"v_and_b32 v{FA}, 31, v0")
    k(f"v_lshlrev_b32 v{FA}, 4, v{FA}")
    k(f"v_and_b32 v{FA+1}, 1, v11")
    k(f"v_lshl_add_u32 v{FA}, v{FA+1}, 3, v{FA}")
    k(f"v_lshrrev_b32 v11, 1, v11")
    k(f"v_lshl_add_u32 v{FA}, v11, 9, v{FA}")
    k("s_mov_b32 exec_lo, 0")
    k(f"ds_write_b32 v6, v{O[0]+12}")
    k("s_mov_b32 exec_lo, -1")
    for q in range(1,4):
        k(f"s_cmp_eq_u32 s7, {q}")
        k(f"s_cbranch_scc1 k2_cmb{q}")
    T0 = S[0]
    LR = P[0]
    for q in range(4):
        k(f"k2_cmb{q}:")
        order = [o for o in range(4) if o != q]
        first = True
        for o in order:
            if o >= 2 and first:
                k("s_mov_b32 exec_lo, 0")
                k(f"ds_write_b32 v6, v{O[1]+12} offset:512")
                k("s_mov_b32 exec_lo, -1")
                first = False
            j = q if q < o else q-1
            src = O[o>>1] + 8*(o&1)
            k(f"ds_write_b128 v7, {r4(src)} offset:{o*6144+j*2048}")
            k(f"ds_write_b128 v7, {r4(src+4)} offset:{o*6144+j*2048+1024}")
        k("s_mov_b64 exec, 1")
        k(f"ds_add_u32 v10, v{vOne} offset:{FL+16}")
        k("s_mov_b64 exec, -1")
        k.stamp(9)
        poll(k, 10, FL+16, 4)
        k.stamp(10)
        k(f"ds_read_b128 {r4(LR)}, v5")
        k(f"ds_read_b128 {r4(LR+4)}, v5 offset:512")
        for j in range(3):
            for hf in range(2):
                k(f"ds_read_b128 {r4(T0+8*j+4*hf)}, v7 offset:{q*6144+j*2048+hf*1024}")
        k("s_waitcnt lgkmcnt(6)")
        for t in range(2):
            b = LR+4*t
            k(f"v_add_f32 v{b}, v{b}, v{b+1}")
            k(f"v_add_f32 v{b+2}, v{b+2}, v{b+3}")
            k(f"v_add_f32 v{b}, v{b}, v{b+2}")
        k(f"v_rcp_f32 v{LR+1}, v{LR+4*(q>>1)}")
        k(f"v_min_f32 v{LR+2}, v{LR}, v{LR+4}")
        k(f"v_add_f32 v{LR+5}, v{LR}, v{LR+4}")
        k(f"s_mov_b32 s20, {hex(f2u(2.0**-40))}")
        k(f"v_cmp_le_f32 vcc, s20, v{LR+2}")
        k(f"s_mov_b32 s20, {hex(f2u(2.0**40))}")
        k(f"v_cmp_ge_f32 s[30:31], s20, v{LR+5}")
        k("s_and_b64 vcc, vcc, s[30:31]")
        k("s_cmp_eq_u64 vcc, -1")
        k("s_cselect_b32 s20, 1, s19")
        k("s_cmp_eq_u32 s20, 0")
        k("s_cbranch_scc1 k2_fallback")
        own = O[q>>1] + 8*(q&1)
        for j in range(3):
            k(f"s_waitcnt lgkmcnt({4-2*j})")
            for r in range(8): k(f"v_add_f32 v{own+r}, v{own+r}, v{T0+8*j+r}")
        for r in range(8): k(f"v_mul_f32 v{own+r}, v{own+r}, v{LR+1}")
        for i in range(4): k(f"v_cvt_pk_bf16_f32 v{T0+i}, v{own+2*i}, v{own+2*i+1}")
        k(f"buffer_store_dwordx2 v[{T0}:{T0+1}], v{FA}, s[8:11], s29 offen")
        if q & 1: k("s_mov_b32 exec_hi, 0")
        k(f"buffer_store_dwordx2 v[{T0+2}:{T0+3}], v{FA}, s[8:11], s29 offen offset:512")
        k.end()
    k("k2_fallback:")
    k("s_waitcnt vmcnt(0) lgkmcnt(0)")
    M0_, M1_ = P[0], P[0]+1
    k(f"v_mov_b32 v{M0_}, 0xff800000"); k(f"v_mov_b32 v{M1_}, 0xff800000")
    k("s_mov_b32 s12, s23")
    k("s_mov_b32 s15, 16")
    k("k2_fb_lp:")
    ld(KB[0], 12, 0); ld(KB[0]+4, 12, 1024)
    k("s_waitcnt vmcnt(0)")
    for t in range(2):
        k(f"{MFMA} {r16(S[t])}, {r4(KB[0])}, {r4(Q[t])}, 0")
        k(f"{MFMA} {r16(S[t])}, {r4(KB[0]+4)}, {r4(Q[t]+4)}, {r16(S[t])}")
    for t in range(2):
        for r in range(0,16,2): k(f"v_max3_f32 v{M0_+t}, v{M0_+t}, v{S[t]+r}, v{S[t]+r+1}")
    k("s_add_u32 s12, s12, 4096")
    k("s_sub_u32 s15, s15, 1")
    k("s_cmp_lg_u32 s15, 0")
    k("s_cbranch_scc1 k2_fb_lp")
    for t in range(2):
        k(f"v_mov_b32 v{M0_+2}, v{M0_+t}")
        k(f"v_permlane32_swap_b32 v{M0_+t}, v{M0_+2}")
        k(f"v_max_f32 v{M0_+t}, v{M0_+t}, v{M0_+2}")
        k(f"ds_write_b32 v6, v{M0_+t} offset:{MP-LP+512*t}")
    k("s_mov_b64 exec, 1")
    k(f"ds_add_u32 v10, v{vOne} offset:{FL+24}")
    k("s_mov_b64 exec, -1")
    poll(k, 10, FL+24, 4)
    k(f"ds_read_b128 {r4(T0)}, v5 offset:{MP-LP}")
    k(f"ds_read_b128 {r4(T0+4)}, v5 offset:{MP-LP+512}")
    k("s_waitcnt lgkmcnt(0)")
    k("s_mov_b32 exec_lo, 0")
    for t in range(2):
        b = T0+4*t
        k(f"v_max3_f32 v{b}, v{b}, v{b+1}, v{b+2}")
        k(f"v_max_f32 v{b}, v{b}, v{b+3}")
        k(f"v_sub_f32 v{b}, 0, v{b}")
        k(f"v_and_b32 v{b+1}, 0xffff0000, v{b}")
        k(f"v_sub_f32 v{b}, v{b}, v{b+1}")
        k(f"v_and_b32 v{b+2}, 0xffff0000, v{b}")
        k(f"v_sub_f32 v{b}, v{b}, v{b+2}")
        k(f"v_lshrrev_b32 v{Q[t]+7}, 16, v{b}")
        k(f"v_lshrrev_b32 v{b+1}, 16, v{b+1}")
        k(f"v_or_b32 v{Q[t]+6}, v{b+1}, v{b+2}")
    k("s_mov_b32 exec_lo, -1")
    k("s_mov_b32 s19, 1")
    k("s_mov_b32 s15, 8"); k("s_mov_b32 s17, 0"); k("s_mov_b32 s18, 0")
    kvloads()
    k("s_branch k2_restart")
    k("k2_end:")
    k("s_endpgm")
    return k, NV, LDS2
```

```python
from dsl import *
from common import *

OFL = 0
WOL = 57344
YI = WOL + 57344
ST = YI + 8192
LDS3 = ST + 8*2560
def r4(a): return f"v[{a}:{a+3}]"
def r16(a): return f"v[{a}:{a+15}]"

def gen_k3():
    k = K("k3_kernel")
    k("s_cmp_ge_u32 s2, 224")
    k("s_cbranch_scc1 k3_end")
    k("s_load_dwordx2 s[24:25], s[0:1], 16")
    k("s_load_dwordx2 s[26:27], s[0:1], 96")
    k("s_load_dwordx2 s[28:29], s[0:1], 112")
    k("v_lshrrev_b32 v1, 6, v0")
    k("v_and_b32 v0, 63, v0")
    k("v_readfirstlane_b32 s3, v1")
    k.stamp_init(2, 28)
    k("v_lshlrev_b32 v1, 4, v0")
    k("s_and_b32 s4, s2, 7")
    k("s_lshr_b32 s5, s2, 3")
    k("s_mul_i32 s6, s5, 37")
    k("s_lshr_b32 s6, s6, 8")
    k("s_mul_i32 s7, s6, 7")
    k("s_sub_u32 s5, s5, s7")
    k("s_lshl_b32 s4, s4, 2")
    k("s_add_u32 s4, s4, s6")
    k("v_lshrrev_b32 v2, 3, v0")
    k("v_mul_u32_u24 v2, 896, v2")
    k("v_bfe_u32 v3, v0, 4, 1")
    k("v_lshlrev_b32 v3, 2, v3")
    k("v_and_b32 v4, 7, v0")
    k("v_xor_b32 v3, v3, v4")
    k("v_lshl_add_u32 v2, v3, 4, v2")
    k("s_mul_i32 s30, s3, 7168")
    k("s_lshl_b32 s20, s5, 7")
    k("s_add_u32 s30, s30, s20")
    k("s_lshl_b32 s31, s3, 10")
    k(f"s_add_u32 s31, s31, {WOL}")
    k("s_lshr_b32 s20, s3, 2")
    k("s_mul_i32 s33, s20, 28672")
    k("s_and_b32 s21, s3, 3")
    k("s_lshl_b32 s21, s21, 10")
    k("s_add_u32 s33, s33, s21")
    k("s_mul_i32 s32, s4, 57344")
    k("s_add_u32 s32, s32, s33")
    k(f"s_add_u32 s32, s32, {WS_OF}")
    k("s_and_b32 s34, s3, 1")
    k("s_bfe_u32 s35, s3, 0x10001")
    k("s_lshl_b32 s36, s4, 1")
    k("s_add_u32 s36, s36, s34")
    k("s_lshl_b32 s37, s5, 1")
    k("s_add_u32 s37, s37, s35")
    k("s_mul_i32 s38, s36, 57344")
    k("s_lshl_b32 s20, s37, 6")
    k("s_add_u32 s38, s38, s20")
    k("s_add_u32 s39, s38, 28672")
    k("v_lshrrev_b32 v5, 2, v0")
    k("v_and_b32 v6, 3, v0")
    k("v_lshlrev_b32 v6, 4, v6")
    k("v_mul_u32_u24 v7, 1792, v5")
    k("v_add_u32 v7, v7, v6")
    k("s_mul_i32 s20, s3, 2560")
    k(f"s_add_u32 s20, s20, {ST}")
    k("v_mul_u32_u24 v8, 80, v5")
    k("v_add3_u32 v8, v8, v6, s20")
    k("v_and_b32 v9, 31, v0")
    k("v_mul_u32_u24 v9, 80, v9")
    k("v_lshrrev_b32 v10, 5, v0")
    k("v_lshl_add_u32 v9, v10, 4, v9")
    k("v_add_u32 v9, s20, v9")
    k("s_waitcnt lgkmcnt(0)")
    k.stamp(1)
    k.diag_start(2, 28)
    srd(k, 8, 28, WS_SIZE)
    srd(k, 12, 24, 401408)
    srd(k, 16, 26, 2048*1792)
    def chunks():
        for c in range(7):
            k(f"s_add_u32 m0, s33, {c*4096}")
            k(f"s_add_u32 s20, s32, {c*4096}")
            k("buffer_load_dwordx4 v1, s[8:11], s20 offen lds")
            k(f"s_add_u32 m0, s31, {c*8192}")
            k(f"s_add_u32 s20, s30, {c*64*896}")
            k("buffer_load_dwordx4 v2, s[12:15], s20 offen lds")
    F = 32
    def epi(off):
        k(f"ds_write_b128 v9, {r4(F)}")
        k(f"ds_write_b128 v9, {r4(F+4)} offset:32")
        k(f"ds_read_b128 {r4(F+8)}, v8")
        k(f"ds_read_b128 {r4(F+12)}, v8 offset:1280")
        k("s_waitcnt lgkmcnt(1)")
        k(f"buffer_store_dwordx4 {r4(F+8)}, v7, s[16:19], s38 offen offset:{off}")
        k("s_waitcnt lgkmcnt(0)")
        k(f"buffer_store_dwordx4 {r4(F+12)}, v7, s[16:19], s39 offen offset:{off}")
    k("s_cmp_ge_u32 s3, 4")
    k("s_cbranch_scc1 k3_y")
    chunks()
    k("v_bfe_u32 v11, v0, 2, 2")
    k("v_lshl_add_u32 v11, v10, 3, v11")
    k("v_lshlrev_b32 v11, 7, v11")
    k("v_bfe_u32 v12, v0, 1, 1")
    k("v_bfe_u32 v13, v0, 4, 1")
    k("v_lshl_add_u32 v12, v13, 1, v12")
    k("v_bfe_u32 v13, v0, 3, 1")
    k("v_xor_b32 v13, s35, v13")
    k("v_lshl_add_u32 v12, v13, 2, v12")
    k("v_lshl_add_u32 v11, v12, 4, v11")
    k("v_and_b32 v12, 1, v0")
    k("v_lshl_add_u32 v11, v12, 3, v11")
    k(f"v_add_u32 v11, {WOL}, v11")
    k("s_mul_i32 s20, s34, 28672")
    k("v_add_u32 v12, s20, v1")
    ACC = 16; B0 = 48
    for c in range(7):
        k(f"s_waitcnt vmcnt({2*(6-c)})")
        k("s_barrier")
        k.stamp(2+c)
        for i in range(4):
            ks = 4*c+i; b = B0+8*i
            k(f"ds_read_b128 {r4(b)}, v12 offset:{ks*1024}")
            k(f"ds_read_b64_tr_b16 v[{b+4}:{b+5}], v11 offset:{ks*2048}")
            k(f"ds_read_b64_tr_b16 v[{b+6}:{b+7}], v11 offset:{ks*2048+512}")
        for i in range(4):
            b = B0+8*i
            k(f"s_waitcnt lgkmcnt({3*(3-i)})")
            k(f"{MFMA} {r16(ACC)}, {r4(b+4)}, {r4(b)}, {'0' if c==0 and i==0 else r16(ACC)}")
    k.stamp(9)
    for i in range(8): k(f"v_cvt_pk_bf16_f32 v{F+i}, v{ACC+2*i}, v{ACC+2*i+1}")
    for a in (0, 1, 4, 5): k(f"v_permlane32_swap_b32 v{F+a}, v{F+a+2}")
    epi(0)
    k.end()
    k("k3_y:")
    k("v_lshlrev_b32 v11, 12, v5")
    k("v_add_u32 v11, v11, v6")
    k("s_lshl_b32 s20, s37, 17")
    k("s_lshl_b32 s21, s36, 6")
    k("s_add_u32 s20, s20, s21")
    k(f"s_add_u32 s20, s20, {WS_YT}")
    k("s_lshl_b32 s22, s3, 11")
    k(f"s_add_u32 s22, s22, {YI-8192}")
    k("s_mov_b32 m0, s22")
    k("s_add_u32 s21, s20, 65536")
    k("buffer_load_dwordx4 v11, s[8:11], s20 offen lds")
    k("s_add_u32 m0, s22, 1024")
    k("s_nop 0")
    k("buffer_load_dwordx4 v11, s[8:11], s21 offen lds")
    chunks()
    k("v_bfe_u32 v11, v0, 2, 2")
    k("v_lshlrev_b32 v11, 6, v11")
    k("v_lshl_add_u32 v11, v10, 9, v11")
    k("v_and_b32 v12, 3, v0")
    k("v_lshl_add_u32 v11, v12, 3, v11")
    k("v_bfe_u32 v12, v0, 4, 1")
    k("v_lshl_add_u32 v11, v12, 5, v11")
    k("v_add_u32 v11, s22, v11")
    k("s_waitcnt vmcnt(14)")
    k.stamp(2)
    for kk in range(2):
        for hf in range(2):
            k(f"ds_read_b64_tr_b16 v[{F+4*kk+2*hf}:{F+4*kk+2*hf+1}], v11 offset:{kk*1024+hf*256}")
    k("s_waitcnt lgkmcnt(0)")
    epi(896)
    for c in range(7):
        k(f"s_waitcnt vmcnt({2*(6-c)+2})")
        k("s_barrier")
    k.end()
    k("k3_end:")
    k("s_endpgm")
    return k, 80, LDS3
```

```python
import re

TRANS = ("v_exp_f32","v_log_f32","v_rcp_f32","v_rsq_f32","v_sqrt_f32","v_sin_f32","v_cos_f32")

def regs_of(tok):
    tok = tok.strip()
    neg = tok.startswith('-')
    if neg: tok = tok[1:]
    tok = tok.strip('|')
    m = re.fullmatch(r'([vsa])\[(\d+):(\d+)\]', tok)
    if m: return {(m.group(1), i) for i in range(int(m.group(2)), int(m.group(3))+1)}
    m = re.fullmatch(r'([vsa])(\d+)', tok)
    if m: return {(m.group(1), int(m.group(2)))}
    if tok == 'vcc': return {('s','vcc_lo'),('s','vcc_hi')}
    if tok in ('vcc_lo','vcc_hi'): return {('s',tok)}
    if tok == 'm0': return {('s','m0')}
    if tok == 'exec': return {('s','exec_lo'),('s','exec_hi')}
    if tok in ('exec_lo','exec_hi'): return {('s',tok)}
    return set()

class I:
    def __init__(self, text):
        self.text = text
        t = text.split(';')[0].strip()
        self.label = None
        self.isinst = True
        if not t or t.startswith('.') :
            self.isinst = False; self.op=''; return
        if t.endswith(':'):
            self.label = t[:-1]; self.isinst = False; self.op=''; return
        parts = t.split(None, 1)
        self.op = op = parts[0]
        rest = parts[1] if len(parts) > 1 else ''
        ops = []; cur=''; depth=0
        for ch in rest:
            if ch=='[': depth+=1
            if ch==']': depth-=1
            if ch==',' and depth==0: ops.append(cur); cur=''
            else: cur+=ch
        if cur.strip(): ops.append(cur)
        mods = ''
        if ops:
            l = ops[-1].strip().split(None,1)
            ops[-1] = l[0]
            mods = l[1] if len(l)>1 else ''
        ops = [o.strip() for o in ops]
        self.ops = ops; self.mods = mods
        self.mfma = op.startswith('v_mfma')
        self.valu = op.startswith('v_') and not self.mfma
        self.trans = op.replace('_e32','').replace('_e64','') in TRANS
        self.salu = op.startswith('s_')
        self.ds = op.startswith('ds_')
        self.vmem = op.startswith('buffer_') or op.startswith('global_')
        self.dpp = 'quad_perm' in mods or 'row_' in mods or 'wave_' in mods or op.endswith('_dpp')
        self.ldsdma = self.vmem and re.search(r'\blds\b', mods) is not None
        self.dst=set(); self.src=set(); self.srcC=set(); self.srcAB=set(); self.sdata=set()
        self.nstates = 1
        if op == 's_nop': self.nstates = int(ops[0])+1
        R = [regs_of(o) for o in ops]
        if self.mfma:
            self.dst=R[0]; self.srcAB=R[1]|R[2]; self.srcC=R[3]; self.src=self.srcAB|self.srcC
            self.passes = 8 if '32x32x16' in op else 4
        elif self.valu:
            if op.startswith('v_cmp'):
                self.dst=R[0]; self.src=set().union(*R[1:])
            elif op.startswith('v_permlane32_swap') or op.startswith('v_permlane16_swap') or op.startswith('v_swap'):
                self.dst=R[0]|R[1]; self.src=R[0]|R[1]
            elif op.startswith('v_add_co') or op.startswith('v_sub_co') or op.startswith('v_addc_co'):
                self.dst=R[0]|R[1]; self.src=set().union(*R[2:])
            else:
                self.dst=R[0]; self.src=set().union(*R[1:]) if len(R)>1 else set()
                if op.startswith('v_fmac') or op.startswith('v_pk_fmac') or op.startswith('v_writelane') or self.dpp: self.src |= R[0]
                if op.startswith('v_cndmask') and len(ops)==3: self.src |= regs_of('vcc')
        elif self.ds:
            if op.startswith('ds_read') :
                self.dst=R[0]; self.src=set().union(*R[1:])
            else:
                self.src=set().union(*R)
        elif self.vmem:
            if '_load' in op and not self.ldsdma:
                self.dst=R[0]; self.src=set().union(*R[1:])
            elif '_store' in op:
                self.src=set().union(*R)
                if op.startswith('buffer_'): self.sdata=R[0]
                else: self.sdata=R[1]
            else:
                self.src=set().union(*R)
            if self.ldsdma: self.src |= {('s','m0')}
        elif self.salu:
            if op.startswith('s_cmp') or op.startswith('s_cbranch') or op in ('s_branch','s_waitcnt','s_nop','s_barrier','s_endpgm','s_setprio','s_sleep'):
                self.src=set().union(*R) if R else set()
            else:
                self.dst=R[0] if R else set(); self.src=set().union(*R[1:]) if len(R)>1 else set()
                if 'saveexec' in op: self.dst |= regs_of('exec')
        self.wide_store = self.vmem and '_store' in op and (op.endswith('x4') or op.endswith('x3'))

def V(s): return {r for r in s if r[0] in ('v','a')}
def S(s): return {r for r in s if r[0]=='s'}

def need(p, c):
    n = 0
    if p.valu:
        vd = V(p.dst); sd = S(p.dst)
        if c.mfma and vd & c.src: n=max(n,2)
        if c.valu:
            if p.trans and not c.trans and vd & c.src: n=max(n,1)
            if c.op.startswith('v_permlane') and vd & c.src: n=max(n,2)
            if (c.op.startswith('v_readlane') or c.op.startswith('v_readfirstlane')) and vd & c.src: n=max(n,1)
            if c.dpp and vd & c.src: n=max(n,2)
            if sd & c.src:
                n=max(n,2)
                if c.op.startswith('v_readlane') or c.op.startswith('v_writelane'): n=max(n,4)
            if ('sdwa' in p.op or 'dst_sel' in p.mods) and vd & (c.src|c.dst): n=max(n,1)
        if c.vmem and sd & c.src: n=max(n,5)
    if p.mfma:
        big = 12 if p.passes==8 else 8
        d = p.dst
        if c.valu and d & (c.src|c.dst): n=max(n,big)
        if (c.vmem or c.ds) and d & (c.src|c.dst): n=max(n,big)
        if c.mfma:
            if d & c.srcAB: n=max(n,big)
            if d & c.srcC and not (d == c.srcC and p.passes==c.passes): n=max(n, 10 if p.passes==8 else 6)
        if c.valu and p.srcC & c.dst: n=max(n, 7 if p.passes==8 else 3)
    if p.salu and ('s','m0') in p.dst and (c.ldsdma or 'addtid' in c.op): n=max(n,1)
    if p.wide_store and p.sdata & c.dst:
        n=max(n, 2 if c.valu else 1)
    return n

def fix_hazards(lines):
    ins = [I(l) for l in lines]
    out = []
    nins = 0
    for c in ins:
        if c.isinst:
            dist = 0; req = 0
            for p in reversed(out):
                if not p.isinst: continue
                if p.op in ('s_branch','s_endpgm'): break
                r = need(p, c)
                if r - dist > req: req = r - dist
                dist += p.nstates
                if dist >= 20: break
            if req > 0:
                out.append(I(f"    s_nop {req-1}   ; hazard")); nins += 1
        out.append(c)
    labels = {x.label:i for i,x in enumerate(out) if x.label}
    for i,b in enumerate(out):
        if b.isinst and (b.op.startswith('s_cbranch') or b.op=='s_branch'):
            tgt = labels[b.ops[0]]
            before = [x for x in out[max(0,i-60):i+1] if x.isinst][-20:]
            after = []
            for x in out[tgt:tgt+60]:
                if x.isinst:
                    after.append(x)
                    if x.op in ('s_branch','s_endpgm'): break
            after = after[:20]
            d0 = 0
            for ci,c in enumerate(after):
                dist = d0
                for p in reversed(before):
                    r = need(p,c)
                    if r > dist:
                        raise Exception(f"branch-edge hazard: '{p.text.strip()}' -> '{c.text.strip()}' need {r} have {dist} (branch {b.text.strip()})")
                    dist += p.nstates
                    if dist>=20: break
                d0 += c.nstates
    return [x.text for x in out], nins

import os
STAMP = int(os.environ.get('STAMP','0'))
class K:
    def __init__(self, name):
        self.name=name; self.L=[]; self.uid=0; self.kidx=None
    def stamp_init(self, kidx, wsreg, wavereg='s3'):
        if not STAMP: return
        self.kidx=kidx; self.wsreg=wsreg
        self("s_memrealtime s[70:71]")
        self(f"s_mov_b32 s69, {wavereg}")
        for i in range(1,16): self(f"s_mov_b64 s[{70+2*i}:{71+2*i}], 0")
        self("s_memtime s[96:97]")
    def stamp(self, i):
        if not STAMP: return
        self(f"s_memrealtime s[{70+2*i}:{71+2*i}]")
    def end(self):
        if STAMP and self.kidx is not None:
            self("s_waitcnt vmcnt(0) lgkmcnt(0)")
            self("s_memrealtime s[100:101]")
            self("s_memtime s[98:99]")
            self("s_mov_b64 exec, -1")
            self("v_mbcnt_lo_u32_b32 v1, -1, 0")
            self("v_mbcnt_hi_u32_b32 v1, -1, v1")
            self("v_lshlrev_b32 v1, 2, v1")
            self("s_lshl_b32 s68, s2, 3")
            self("s_add_u32 s68, s68, s69")
            self("s_lshl_b32 s68, s68, 6")
            self(f"s_add_u32 s68, s68, {(14<<20) + self.kidx*(256*8*64)}")
            self("v_add_u32 v1, s68, v1")
            self("v_mov_b32 v0, 0")
            self("s_waitcnt lgkmcnt(0)")
            for i in range(16): self(f"v_writelane_b32 v0, s{70+2*i}, {i}")
            self("s_mov_b64 exec, 0xffff")
            if STAMP == 1:
                self(f"global_store_dword v1, v0, s[{self.wsreg}:{self.wsreg+1}]")
            else:
                L = self.lab("nodbg")
                sel = [int(x) for x in os.environ.get('SEL%d'%self.kidx, '0,1,2,3,15').split(',')]
                self(f"s_lshl_b32 s68, s2, 3")
                self(f"s_add_u32 s68, s68, s69")
                self(f"s_cmp_lg_u32 s68, {int(os.environ.get('SELW','0'))}")
                self(f"s_cbranch_scc1 {L}")
                self("s_load_dwordx2 s[66:67], s[0:1], 104")
                self("s_waitcnt lgkmcnt(0)")
                self(f"s_add_u32 s66, s66, {512*(int(os.environ.get('NK','3'))-1-self.kidx)}")
                self(f"s_addc_u32 s67, s67, 0")
                self("s_mov_b64 exec, 1")
                for j,i in enumerate(sel):
                    self(f"v_mov_b32 v0, s{70+2*i}")
                    self(f"v_mov_b32 v1, {20*self.kidx+4*j}")
                    self(f"global_store_dword v1, v0, s[66:67]")
                self(f"{L}:")
        self("s_endpgm")
    def __call__(self, s):
        for l in s.split('\n'):
            l=l.rstrip()
            if not l.strip(): continue
            if l.strip().endswith(':'): self.L.append(l.strip())
            else: self.L.append('    '+l.strip())
    def lab(self, base):
        self.uid+=1; return f"{self.name}_{base}_{self.uid}"
    def text(self, vgpr, sgpr=102):
        body, n = fix_hazards(self.L)
        hdr = f".globl {self.name}\n.p2align 8\n.type {self.name},@function\n{self.name}:\n"
        return hdr + "\n".join(body) + "\n", n

def vr(a, n=1):
    return f"v{a}" if n==1 else f"v[{a}:{a+n-1}]"
def sr(a, n=1):
    return f"s{a}" if n==1 else f"s[{a}:{a+n-1}]"
```

```python
import re

TRANS = ("v_exp_f32","v_log_f32","v_rcp_f32","v_rsq_f32","v_sqrt_f32","v_sin_f32","v_cos_f32")

def regs_of(tok):
    tok = tok.strip()
    neg = tok.startswith('-')
    if neg: tok = tok[1:]
    tok = tok.strip('|')
    m = re.fullmatch(r'([vsa])\[(\d+):(\d+)\]', tok)
    if m: return {(m.group(1), i) for i in range(int(m.group(2)), int(m.group(3))+1)}
    m = re.fullmatch(r'([vsa])(\d+)', tok)
    if m: return {(m.group(1), int(m.group(2)))}
    if tok == 'vcc': return {('s','vcc_lo'),('s','vcc_hi')}
    if tok in ('vcc_lo','vcc_hi'): return {('s',tok)}
    if tok == 'm0': return {('s','m0')}
    if tok == 'exec': return {('s','exec_lo'),('s','exec_hi')}
    if tok in ('exec_lo','exec_hi'): return {('s',tok)}
    return set()

class I:
    def __init__(self, text):
        self.text = text
        t = text.split(';')[0].strip()
        self.label = None
        self.isinst = True
        if not t or t.startswith('.') :
            self.isinst = False; self.op=''; return
        if t.endswith(':'):
            self.label = t[:-1]; self.isinst = False; self.op=''; return
        parts = t.split(None, 1)
        self.op = op = parts[0]
        rest = parts[1] if len(parts) > 1 else ''
        ops = []; cur=''; depth=0
        for ch in rest:
            if ch=='[': depth+=1
            if ch==']': depth-=1
            if ch==',' and depth==0: ops.append(cur); cur=''
            else: cur+=ch
        if cur.strip(): ops.append(cur)
        mods = ''
        if ops:
            l = ops[-1].strip().split(None,1)
            ops[-1] = l[0]
            mods = l[1] if len(l)>1 else ''
        ops = [o.strip() for o in ops]
        self.ops = ops; self.mods = mods
        self.mfma = op.startswith('v_mfma')
        self.valu = op.startswith('v_') and not self.mfma
        self.trans = op.replace('_e32','').replace('_e64','') in TRANS
        self.salu = op.startswith('s_')
        self.ds = op.startswith('ds_')
        self.vmem = op.startswith('buffer_') or op.startswith('global_')
        self.dpp = 'quad_perm' in mods or 'row_' in mods or 'wave_' in mods or op.endswith('_dpp')
        self.ldsdma = self.vmem and re.search(r'\blds\b', mods) is not None
        self.dst=set(); self.src=set(); self.srcC=set(); self.srcAB=set(); self.sdata=set()
        self.nstates = 1
        if op == 's_nop': self.nstates = int(ops[0])+1
        R = [regs_of(o) for o in ops]
        if self.mfma:
            self.dst=R[0]; self.srcAB=R[1]|R[2]; self.srcC=R[3]; self.src=self.srcAB|self.srcC
            self.passes = 8 if '32x32x16' in op else 4
        elif self.valu:
            if op.startswith('v_cmp'):
                self.dst=R[0]; self.src=set().union(*R[1:])
            elif op.startswith('v_permlane32_swap') or op.startswith('v_permlane16_swap') or op.startswith('v_swap'):
                self.dst=R[0]|R[1]; self.src=R[0]|R[1]
            elif op.startswith('v_add_co') or op.startswith('v_sub_co') or op.startswith('v_addc_co'):
                self.dst=R[0]|R[1]; self.src=set().union(*R[2:])
            else:
                self.dst=R[0]; self.src=set().union(*R[1:]) if len(R)>1 else set()
                if op.startswith('v_fmac') or op.startswith('v_pk_fmac') or op.startswith('v_writelane') or self.dpp: self.src |= R[0]
                if op.startswith('v_cndmask') and len(ops)==3: self.src |= regs_of('vcc')
        elif self.ds:
            if op.startswith('ds_read') :
                self.dst=R[0]; self.src=set().union(*R[1:])
            else:
                self.src=set().union(*R)
        elif self.vmem:
            if '_load' in op and not self.ldsdma:
                self.dst=R[0]; self.src=set().union(*R[1:])
            elif '_store' in op:
                self.src=set().union(*R)
                if op.startswith('buffer_'): self.sdata=R[0]
                else: self.sdata=R[1]
            else:
                self.src=set().union(*R)
            if self.ldsdma: self.src |= {('s','m0')}
        elif self.salu:
            if op.startswith('s_cmp') or op.startswith('s_cbranch') or op in ('s_branch','s_waitcnt','s_nop','s_barrier','s_endpgm','s_setprio','s_sleep'):
                self.src=set().union(*R) if R else set()
            else:
                self.dst=R[0] if R else set(); self.src=set().union(*R[1:]) if len(R)>1 else set()
                if 'saveexec' in op: self.dst |= regs_of('exec')
        self.wide_store = self.vmem and '_store' in op and (op.endswith('x4') or op.endswith('x3'))

def V(s): return {r for r in s if r[0] in ('v','a')}
def S(s): return {r for r in s if r[0]=='s'}

def need(p, c):
    n = 0
    if p.valu:
        vd = V(p.dst); sd = S(p.dst)
        if c.mfma and vd & c.src: n=max(n,2)
        if c.valu:
            if p.trans and not c.trans and vd & c.src: n=max(n,1)
            if c.op.startswith('v_permlane') and vd & c.src: n=max(n,2)
            if (c.op.startswith('v_readlane') or c.op.startswith('v_readfirstlane')) and vd & c.src: n=max(n,1)
            if c.dpp and vd & c.src: n=max(n,2)
            if sd & c.src:
                n=max(n,2)
                if c.op.startswith('v_readlane') or c.op.startswith('v_writelane'): n=max(n,4)
            if ('sdwa' in p.op or 'dst_sel' in p.mods) and vd & (c.src|c.dst): n=max(n,1)
        if c.vmem and sd & c.src: n=max(n,5)
    if p.mfma:
        big = 12 if p.passes==8 else 8
        d = p.dst
        if c.valu and d & (c.src|c.dst): n=max(n,big)
        if (c.vmem or c.ds) and d & (c.src|c.dst): n=max(n,big)
        if c.mfma:
            if d & c.srcAB: n=max(n,big)
            if d & c.srcC and not (d == c.srcC and p.passes==c.passes): n=max(n, 10 if p.passes==8 else 6)
        if c.valu and p.srcC & c.dst: n=max(n, 7 if p.passes==8 else 3)
    if p.salu and ('s','m0') in p.dst and (c.ldsdma or 'addtid' in c.op): n=max(n,1)
    if p.wide_store and p.sdata & c.dst:
        n=max(n, 2 if c.valu else 1)
    return n

def fix_hazards(lines):
    ins = [I(l) for l in lines]
    out = []
    nins = 0
    for c in ins:
        if c.isinst:
            dist = 0; req = 0
            for p in reversed(out):
                if not p.isinst: continue
                if p.op in ('s_branch','s_endpgm'): break
                r = need(p, c)
                if r - dist > req: req = r - dist
                dist += p.nstates
                if dist >= 20: break
            if req > 0:
                out.append(I(f"    s_nop {req-1}   ; hazard")); nins += 1
        out.append(c)
    labels = {x.label:i for i,x in enumerate(out) if x.label}
    for i,b in enumerate(out):
        if b.isinst and (b.op.startswith('s_cbranch') or b.op=='s_branch'):
            tgt = labels[b.ops[0]]
            before = [x for x in out[max(0,i-60):i+1] if x.isinst][-20:]
            after = []
            for x in out[tgt:tgt+60]:
                if x.isinst:
                    after.append(x)
                    if x.op in ('s_branch','s_endpgm'): break
            after = after[:20]
            d0 = 0
            for ci,c in enumerate(after):
                dist = d0
                for p in reversed(before):
                    r = need(p,c)
                    if r > dist:
                        raise Exception(f"branch-edge hazard: '{p.text.strip()}' -> '{c.text.strip()}' need {r} have {dist} (branch {b.text.strip()})")
                    dist += p.nstates
                    if dist>=20: break
                d0 += c.nstates
    return [x.text for x in out], nins

import os
STAMP = int(os.environ.get('STAMP','0'))
class K:
    def __init__(self, name):
        self.name=name; self.L=[]; self.uid=0; self.kidx=None
    def stamp_init(self, kidx, wsreg, wavereg='s3'):
        if not STAMP: return
        self.kidx=kidx; self.wsreg=wsreg
        self("s_memrealtime s[70:71]")
        self(f"s_mov_b32 s69, {wavereg}")
        for i in range(1,16): self(f"s_mov_b64 s[{70+2*i}:{71+2*i}], 0")
        self("s_memtime s[96:97]")
    def diag_start(self, kidx, wsreg, wavereg='s3'):
        D = os.environ.get('DIAG')
        if not D: return
        kind, us = D.split(':'); t = int(float(us)*100)
        self.dk = kidx; self.wsreg = wsreg
        off = 15<<20
        if kidx == 0:
            L = self.lab("d0")
            self(f"s_lshl_b32 s68, s2, 3")
            self(f"s_add_u32 s68, s68, {wavereg}")
            self(f"s_cmp_lg_u32 s68, 0")
            self(f"s_cbranch_scc1 {L}")
            if os.environ.get('FIRST'): self.L.insert(0, "    s_memrealtime s[70:71]")
            else: self("s_memrealtime s[70:71]")
            self("s_waitcnt lgkmcnt(0)")
            self("v_mov_b32 v100, s70")
            self(f"v_mov_b32 v101, {off}")
            self(f"global_store_dword v101, v100, s[{wsreg}:{wsreg+1}]")
            self(f"{L}:")
        elif kind == f"k{kidx+1}":
            self.spin(t)
    def spin(self, t):
        self(f"s_add_u32 s70, s{self.wsreg}, {15<<20}")
        self(f"s_addc_u32 s71, s{self.wsreg+1}, 0")
        self("s_load_dword s68, s[70:71], 0")
        L = self.lab("spin")
        self(f"{L}:")
        self("s_memrealtime s[72:73]")
        self("s_waitcnt lgkmcnt(0)")
        self("s_sub_u32 s72, s72, s68")
        self(f"s_cmp_lt_u32 s72, {t}")
        self(f"s_cbranch_scc1 {L}")
    def stamp(self, i):
        if not STAMP: return
        self(f"s_memrealtime s[{70+2*i}:{71+2*i}]")
    def end(self):
        D = os.environ.get('DIAG')
        if D and D.startswith('end') and self.dk == int(os.environ.get('NK','3'))-1:
            self.spin(int(float(D.split(':')[1])*100))
        if STAMP and self.kidx is not None:
            self("s_waitcnt vmcnt(0) lgkmcnt(0)")
            self("s_memrealtime s[100:101]")
            self("s_memtime s[98:99]")
            self("s_mov_b64 exec, -1")
            self("v_mbcnt_lo_u32_b32 v1, -1, 0")
            self("v_mbcnt_hi_u32_b32 v1, -1, v1")
            self("v_lshlrev_b32 v1, 2, v1")
            self("s_lshl_b32 s68, s2, 3")
            self("s_add_u32 s68, s68, s69")
            self("s_lshl_b32 s68, s68, 6")
            self(f"s_add_u32 s68, s68, {(14<<20) + self.kidx*(256*8*64)}")
            self("v_add_u32 v1, s68, v1")
            self("v_mov_b32 v0, 0")
            self("s_waitcnt lgkmcnt(0)")
            for i in range(16): self(f"v_writelane_b32 v0, s{70+2*i}, {i}")
            self("s_mov_b64 exec, 0xffff")
            if STAMP == 1:
                self(f"global_store_dword v1, v0, s[{self.wsreg}:{self.wsreg+1}]")
            else:
                L = self.lab("nodbg")
                sel = [int(x) for x in os.environ.get('SEL%d'%self.kidx, '0,1,2,3,15').split(',')]
                self(f"s_lshl_b32 s68, s2, 3")
                self(f"s_add_u32 s68, s68, s69")
                self(f"s_cmp_lg_u32 s68, {int(os.environ.get('SELW','0'))}")
                self(f"s_cbranch_scc1 {L}")
                self("s_load_dwordx2 s[66:67], s[0:1], 104")
                self("s_waitcnt lgkmcnt(0)")
                self(f"s_add_u32 s66, s66, {512*(int(os.environ.get('NK','3'))-1-self.kidx)}")
                self(f"s_addc_u32 s67, s67, 0")
                self("s_mov_b64 exec, 1")
                for j,i in enumerate(sel):
                    self(f"v_mov_b32 v0, s{70+2*i}")
                    self(f"v_mov_b32 v1, {20*self.kidx+4*j}")
                    self(f"global_store_dword v1, v0, s[66:67]")
                self(f"{L}:")
        self("s_endpgm")
    def __call__(self, s):
        for l in s.split('\n'):
            l=l.rstrip()
            if not l.strip(): continue
            if l.strip().endswith(':'): self.L.append(l.strip())
            else: self.L.append('    '+l.strip())
    def lab(self, base):
        self.uid+=1; return f"{self.name}_{base}_{self.uid}"
    def text(self, vgpr, sgpr=102):
        body, n = fix_hazards(self.L)
        hdr = f".globl {self.name}\n.p2align 8\n.type {self.name},@function\n{self.name}:\n"
        return hdr + "\n".join(body) + "\n", n

def vr(a, n=1):
    return f"v{a}" if n==1 else f"v[{a}:{a+n-1}]"
def sr(a, n=1):
    return f"s{a}" if n==1 else f"s[{a}:{a+n-1}]"
```

```python
import sys, os
sys.path.insert(0,'gen')
import dsl, build as B
from dsl import K
NAME = B.NAME
orig_end = K.end
phase = [0]
def end(self):
    if phase[0] < 2: self(f"s_branch sync{phase[0]}")
    else: orig_end(self)
K.end = end
def si(self, kidx, wsreg, wavereg='s3'):
    if kidx == 0: self(f"s_mov_b32 s99, {wavereg}")
K.stamp_init = si
from k1 import gen_k1
from k2 import gen_k2
from k3 import gen_k3
ks = []
for i,g in enumerate((gen_k1, gen_k2, gen_k3)):
    phase[0] = i
    ks.append(g())
M = K(NAME+"_kernel")
for i,(k,vg,lds) in enumerate(ks):
    M.L += k.L
    if i < 2:
        M(f"sync{i}:")
        M("s_mov_b64 exec, -1")
        M("s_waitcnt vmcnt(0) lgkmcnt(0)")
        M("s_barrier")
        M("s_cmp_lg_u32 s99, 0")
        M(f"s_cbranch_scc1 sync{i}_w")
        M("s_load_dwordx2 s[4:5], s[0:1], 104")
        M("buffer_wbl2 sc1")
        M("s_waitcnt vmcnt(0) lgkmcnt(0)")
        M("s_mov_b64 exec, 1")
        M(f"v_mov_b32 v1, {128*i}")
        M("v_mov_b32 v2, 1")
        M("global_atomic_add v1, v2, s[4:5] sc1")
        M("s_memrealtime s[6:7]")
        M("s_waitcnt lgkmcnt(0)")
        M(f"sync{i}_p:")
        M("global_load_dword v3, v1, s[4:5] sc1")
        M("s_memrealtime s[8:9]")
        M("s_waitcnt vmcnt(0) lgkmcnt(0)")
        M("s_sub_u32 s8, s8, s6")
        M("s_cmp_gt_u32 s8, 100000")
        M(f"s_cbranch_scc1 sync{i}_x")
        M("v_readfirstlane_b32 s10, v3")
        M("s_cmp_lt_u32 s10, 256")
        M(f"s_cbranch_scc1 sync{i}_p")
        M(f"sync{i}_x:")
        M("s_mov_b64 exec, -1")
        M("buffer_inv sc1")
        M("s_waitcnt vmcnt(0)")
        M(f"sync{i}_w:")
        M("s_barrier")
        M("v_mbcnt_lo_u32_b32 v0, -1, 0")
        M("v_mbcnt_hi_u32_b32 v0, -1, v0")
        M("s_lshl_b32 s4, s99, 6")
        M("v_add_u32 v0, s4, v0")
path = sys.argv[1]
B.build([(M, 172, max(k[2] for k in ks), 256, 512)], path)
s = open(path).read().replace(f"; @launch kernel={M.name} ", "; @launch ")
open(path,'w').write(s)
```

```python
from dsl import *
from common import *

L_W = 0
L_X = 86016
NSLOT = 3
L_KB = L_X + 4*NSLOT*4096
L_FL = L_KB + 4*4096
LDS1 = L_FL + 64

def signal(k, vfl, vone, idx):
    k("s_mov_b64 exec, 1")
    k(f"ds_add_u32 v{vfl}, v{vone} offset:{4*idx}")
    k("s_mov_b64 exec, -1")
def poll(k, vfl, vt, idx, n):
    L = k.lab("poll")
    k(f"{L}:")
    k(f"ds_read_b32 v{vt}, v{vfl} offset:{4*idx}")
    k("s_waitcnt lgkmcnt(0)")
    k(f"v_readfirstlane_b32 s20, v{vt}")
    k(f"s_cmp_lt_u32 s20, {n}")
    k(f"s_cbranch_scc1 {L}")

def gen_k1(PK=True):
    k = K("k1_kernel")
    k("s_cmp_ge_u32 s2, 224")
    k("s_cbranch_scc1 k1_end")
    k("s_load_dwordx16 s[36:51], s[0:1], 0")
    k("s_load_dwordx8 s[52:59], s[0:1], 64")
    k("s_load_dwordx2 s[60:61], s[0:1], 112")
    k("v_lshrrev_b32 v1, 6, v0")
    k("v_and_b32 v0, 63, v0")
    k("v_readfirstlane_b32 s3, v1")
    k("v_lshlrev_b32 v1, 2, v0")
    k("v_and_b32 v2, 60, v1")
    k(f"v_add_u32 v2, {L_FL}, v2")
    k("v_mov_b32 v3, 0")
    k("ds_write_b32 v2, v3")
    k.stamp_init(0, 60)
    k("s_and_b32 s6, s2, 7")
    k("s_lshr_b32 s7, s2, 3")
    k("s_and_b32 s4, s6, 1")
    k("s_mul_i32 s4, s4, 7")
    k("s_lshr_b32 s20, s7, 2")
    k("s_add_u32 s4, s4, s20")
    k("s_lshr_b32 s5, s6, 1")
    k("s_lshl_b32 s5, s5, 2")
    k("s_and_b32 s20, s7, 3")
    k("s_add_u32 s5, s5, s20")
    k("s_cmp_ge_u32 s3, 4")
    k("s_cbranch_scc1 k1_kgen")
    vX0, vX1 = 3, 4
    k("v_lshrrev_b32 v5, 3, v0")
    k("v_mul_u32_u24 v5, 896, v5")
    k("v_lshrrev_b32 v6, 4, v0")
    k("v_and_b32 v7, 7, v0")
    k("v_xor_b32 v6, v6, v7")
    k(f"v_lshl_add_u32 v{vX0}, v6, 4, v5")
    k("v_xor_b32 v6, 4, v6")
    k(f"v_lshl_add_u32 v{vX1}, v6, 4, v5")
    k("s_lshl_b32 s23, s5, 2")
    k("s_add_u32 s23, s23, s3")
    k("s_mul_i32 s24, s23, 28672")
    k(f"s_mul_i32 s25, s3, {NSLOT*4096}")
    k(f"s_add_u32 s25, s25, {L_X}")
    k("s_waitcnt lgkmcnt(0)")
    k("s_barrier")
    k.stamp(1)
    k.diag_start(0, 60)
    srd(k, 8, 36, 1835008)
    srd(k, 16, 60, WS_SIZE)
    def dmaX(s):
        for i in range(4):
            k(f"s_add_u32 m0, s25, {(s%NSLOT)*4096 + i*1024}")
            k(f"s_add_u32 s20, s24, {i*8*896 + s*128}")
            k(f"buffer_load_dwordx4 v{vX1 if i&1 else vX0}, s[8:11], s20 offen lds")
    for s in range(NSLOT): dmaX(s)
    k.stamp(2)
    vXr = [8,9,10,11]; vT, vT2, vFl, vF, vTmp = 12, 13, 14, 15, 5
    k("v_and_b32 v5, 31, v0")
    k("v_lshrrev_b32 v6, 5, v0")
    k("v_bfe_u32 v7, v0, 1, 3")
    k("v_xor_b32 v6, v6, v7")
    k("v_lshlrev_b32 v5, 7, v5")
    k("v_add_u32 v5, s25, v5")
    for ks in range(4):
        k(f"v_xor_b32 v7, {2*ks}, v6")
        k(f"v_lshl_add_u32 v{vXr[ks]}, v7, 4, v5")
    k("v_bfe_u32 v5, v0, 2, 2")
    k("v_lshrrev_b32 v6, 5, v0")
    k("v_lshl_add_u32 v5, v6, 3, v5")
    k(f"v_mul_u32_u24 v{vT}, 192, v5")
    k("v_and_b32 v5, 3, v0")
    k(f"v_lshl_add_u32 v{vT}, v5, 3, v{vT}")
    k("v_bfe_u32 v5, v0, 4, 1")
    k(f"v_lshl_add_u32 v{vT}, v5, 5, v{vT}")
    k(f"v_add_u32 v{vT2}, {L_W+14*3072}, v{vT}")
    k(f"v_mov_b32 v{vFl}, {L_FL}")
    k("s_mul_i32 s6, s4, 3")
    k("s_cmp_ge_u32 s4, 10")
    k("s_cbranch_scc1 k1_v2")
    k("s_cmp_eq_u32 s4, 9")
    k("s_cbranch_scc1 k1_v1")
    D = [16, 32, 48]
    FB = [64, 80]
    vA = [96, 98, 100]; vPad = 102
    PADV = 104
    for var, isV in enumerate(((0,0,0),(0,1,1),(1,1,1))):
        k(f"k1_v{var}:")
        for i in range(3):
            sB, sSc, sP, sM, sH = 26+i, 29+i, 62+2*i, 40+4*i, 32+i
            k(f"s_add_u32 s20, s6, {i}")
            if isV[i]:
                k("s_sub_u32 s20, s20, 28")
                k("s_lshl_b32 s20, s20, 5")
                k("v_and_b32 v5, 31, v0")
                k("v_add_u32 v5, s20, v5")
                k("v_mul_u32_u24 v6, 2341, v5")
                k("v_lshrrev_b32 v6, 16, v6")
                k("v_mul_u32_u24 v7, 28, v6")
                k("v_sub_u32 v5, v5, v7")
                k("v_and_b32 v7, 32, v0")
                k("v_add_u32 v5, v5, v7")
                k("v_lshlrev_b32 v5, 4, v5")
                k(f"v_lshl_add_u32 v{vA[i]}, v6, 18, v5")
                k(f"s_lshl_b32 s{sB}, s23, 12")
                k(f"s_add_u32 s{sB}, s{sB}, {WS_KV+2048}")
            else:
                k("s_cmp_ge_u32 s20, 14")
                k("s_cselect_b32 s21, 14, 0")
                k("s_sub_u32 s20, s20, s21")
                k("s_cmp_ge_u32 s21, 14")
                k(f"s_cselect_b32 s{sH}, 18, 17")
                k(f"s_cselect_b32 s{sSc}, 1.0, {hex(f2u(28**-0.5*LOG2E))}")
                k(f"s_cselect_b32 s{sP}, 0x3f803f80, 0")
                k(f"s_cselect_b32 s{sP+1}, 0x3f80, 0")
                k(f"s_cselect_b32 s21, {WS_KV}, {WS_QF}")
                k(f"s_sub_u32 s22, s{sH}, 6")
                k(f"s_lshl_b32 s{sB}, s23, s22")
                k(f"s_add_u32 s{sB}, s{sB}, s21")
                k("s_lshl_b32 s20, s20, 2")
                for j in range(2):
                    k("v_lshrrev_b32 v5, 5, v0")
                    k(f"v_add3_u32 v5, v5, s20, {2*j}")
                    k("v_mul_u32_u24 v6, 37, v5")
                    k("v_lshrrev_b32 v6, 8, v6")
                    k("v_add_u32 v5, v5, v6")
                    k("v_and_b32 v6, 7, v5")
                    k(f"v_cmp_eq_u32 s[{sM+2*j}:{sM+2*j+1}], 3, v6")
                    k("v_lshrrev_b32 v6, 2, v5")
                    k(f"v_lshlrev_b32 v6, s{sH}, v6")
                    k("v_and_b32 v5, 3, v5")
                    k("v_lshl_add_u32 v6, v5, 9, v6")
                    k("v_and_b32 v5, 31, v0")
                    k(f"v_lshl_add_u32 v{vA[i]+j}, v5, 4, v6")
        if var:
            if var == 1:
                k("s_mov_b32 s20, 0"); k("s_mov_b32 s21, 64")
            else:
                k("s_mul_i32 s20, s4, 96"); k("s_sub_u32 s20, s20, 896"); k("s_add_u32 s21, s20, 96")
                k("s_mul_i32 s20, s20, 2341"); k("s_lshr_b32 s20, s20, 16")
            k("v_lshrrev_b32 v5, 4, v0")
            k("v_add_u32 v5, s20, v5")
            k("v_mul_u32_u24 v6, 28, v5")
            k("v_add_u32 v6, 27, v6")
            k("v_cmp_gt_u32 s[56:57], s21, v6")
            k("v_bfe_u32 v6, v0, 2, 2")
            k("v_lshlrev_b32 v6, 9, v6")
            k("v_lshl_add_u32 v6, v5, 18, v6")
            k("v_and_b32 v5, 3, v0")
            k("v_cmp_eq_u32 vcc, 0, v5")
            k("v_lshl_add_u32 v6, v5, 4, v6")
            k(f"v_add_u32 v{vPad}, 448, v6")
            k("v_mov_b32 v5, 0x3f803f80")
            for e in range(4): k(f"v_cndmask_b32 v{PADV+e}, 0, v5, vcc")
            k("s_mov_b64 exec, s[56:57]")
            k(f"buffer_store_dwordx4 v[{PADV}:{PADV+3}], v{vPad}, s[16:19], s28 offen")
            k("s_mov_b64 exec, -1")
        nx = 1 if var else 0
        def reads(ksg):
            s, ks = ksg//4, ksg%4
            b = FB[ksg&1]
            k(f"ds_read_b128 v[{b}:{b+3}], v{vXr[ks]} offset:{(s%NSLOT)*4096}")
            for m in range(3):
                for hf in range(2):
                    if ksg < 14: a, off = vT, L_W + ksg*3072 + hf*768 + m*64
                    else: a, off = vT2, (ksg-14)*3072 + hf*768 + m*64
                    r = b+4+4*m+2*hf
                    k(f"ds_read_b64_tr_b16 v[{r}:{r+1}], v{a} offset:{off}")
        def mfmas(ksg):
            b = FB[ksg&1]
            x = f"v[{b}:{b+3}]"
            for m in range(3):
                c = "0" if ksg==0 else f"v[{D[m]}:{D[m]+15}]"
                w = f"v[{b+4+4*m}:{b+7+4*m}]"
                k(f"{MFMA} v[{D[m]}:{D[m]+15}], {x if isV[m] else w}, {w if isV[m] else x}, {c}")
        for s in range(7):
            if s > 0:
                k("s_waitcnt lgkmcnt(0)")
                k(f"v_readfirstlane_b32 s35, v{vF}")
                mfmas(4*s-1)
                if s-1+NSLOT < 7: dmaX(s-1+NSLOT)
                L = k.lab("ok")
                k("s_cmp_ge_u32 s35, 4")
                k(f"s_cbranch_scc1 {L}")
                poll(k, vFl, vTmp, s, 4)
                k(f"{L}:")
            else:
                poll(k, vFl, vTmp, 0, 4)
            yo = 4*(min(6, s-1+NSLOT if s else NSLOT-1) - s) + (nx if s < NSLOT else 0)
            k(f"s_waitcnt vmcnt({yo})")
            k.stamp(4+s)
            reads(4*s)
            for ks in range(1,4):
                if ks == 3 and s < 6: k(f"ds_read_b32 v{vF}, v{vFl} offset:{4*(s+1)}")
                reads(4*s+ks)
                k(f"s_waitcnt lgkmcnt({8 if (ks==3 and s<6) else 7})")
                mfmas(4*s+ks-1)
        k("s_waitcnt lgkmcnt(0)")
        mfmas(27)
        k.stamp(11)
        for i in range(3):
            sB, sSc, sP, sM, sH = 26+i, 29+i, 62+2*i, 40+4*i, 32+i
            P = 64+12*i
            if not isV[i]:
                for r in range(0,16,2): k(f"v_pk_mul_f32 v[{D[i]+r}:{D[i]+r+1}], v[{D[i]+r}:{D[i]+r+1}], s[{sSc}:{sSc+1}] op_sel_hi:[1,0]" if sSc%2==0 else f"v_pk_mul_f32 v[{D[i]+r}:{D[i]+r+1}], v[{D[i]+r}:{D[i]+r+1}], s[{sSc-1}:{sSc}] op_sel:[0,1] op_sel_hi:[1,1]")
            for q in range(8): k(f"v_cvt_pk_bf16_f32 v{P+q}, v{D[i]+2*q}, v{D[i]+2*q+1}")
            if isV[i]:
                k(f"buffer_store_dwordx4 v[{P}:{P+3}], v{vA[i]}, s[16:19], s{sB} offen")
                k(f"buffer_store_dwordx4 v[{P+4}:{P+7}], v{vA[i]}, s[16:19], s{sB} offen offset:1024")
            else:
                for a in (0, 1, 4, 5): k(f"v_permlane32_swap_b32 v{P+a}, v{P+a+2}")
                k(f"v_mov_b32 v{P+10}, s{sP}")
                k(f"v_mov_b32 v{P+11}, s{sP+1}")
                k(f"s_lshl_b32 s21, 1, s{sH}")
                k(f"s_add_u32 s21, s21, s{sB}")
                for j in range(2):
                    L = k.lab("nomix")
                    R = P+4*j
                    k(f"s_mov_b64 exec, s[{sM+2*j}:{sM+2*j+1}]")
                    k(f"s_cbranch_execz {L}")
                    k(f"v_mov_b32 v{P+8}, v{R+2}")
                    k(f"v_mov_b32 v{P+9}, v{R+3}")
                    k(f"v_mov_b32 v{R+2}, v{P+10}")
                    k(f"v_mov_b32 v{R+3}, v{P+11}")
                    k(f"buffer_store_dwordx4 v[{P+8}:{P+11}], v{vA[i]+j}, s[16:19], s21 offen")
                    k(f"{L}:")
                    k("s_mov_b64 exec, -1")
                    k(f"buffer_store_dwordx4 v[{R}:{R+3}], v{vA[i]+j}, s[16:19], s{sB} offen")
        k.end()

    k("k1_kgen:")
    k("s_sub_u32 s3, s3, 4")
    vW = [47, 168, 169]
    for i in range(3):
        k(f"v_add_u32 v8, {64*i}, v0")
        k("v_mul_u32_u24 v9, 171, v8")
        k("v_lshrrev_b32 v9, 11, v9")
        k("v_mul_u32_u24 v10, 12, v9")
        k("v_sub_u32 v8, v8, v10")
        k("v_mul_u32_u24 v9, 2688, v9")
        k(f"v_lshl_add_u32 v{vW[i]}, v8, 4, v9")
    k("s_mul_i32 s33, s3, 43008")
    k("s_mul_i32 s20, s4, 192")
    k("s_add_u32 s33, s33, s20")
    k("s_mul_i32 s34, s3, 3072")
    k("s_and_b32 s21, s3, 1")
    k("s_lshl_b32 s22, s2, 1")
    k("s_add_u32 s22, s22, s21")
    k("s_lshr_b32 s23, s3, 1")
    k("s_lshl_b32 s24, s22, 9")
    k("s_lshl_b32 s20, s23, 8")
    k("s_add_u32 s24, s24, s20")
    k("v_add_u32 v1, s24, v1")
    k("s_lshl_b32 s25, s2, 2")
    k("s_lshl_b32 s26, s2, 2")
    k("s_add_u32 s26, s26, s3")
    k("s_mul_i32 s27, s26, 4682")
    k("s_lshr_b32 s27, s27, 16")
    k("s_mul_i32 s20, s27, 14")
    k("s_sub_u32 s28, s26, s20")
    k("s_lshl_b32 s29, s3, 12")
    k(f"s_add_u32 s29, s29, {L_KB}")
    k("v_lshrrev_b32 v8, 2, v0")
    k("v_mul_u32_u24 v8, 896, v8")
    k("v_and_b32 v9, 3, v0")
    k("v_lshl_add_u32 v8, v9, 4, v8")
    k("s_mul_i32 s30, s27, 28672")
    k("s_lshl_b32 s20, s28, 6")
    k("s_add_u32 s30, s30, s20")
    k("s_waitcnt lgkmcnt(0)")
    k("s_barrier")
    k.stamp(1)
    k("s_load_dword s62, s[56:57], s25")
    k("s_load_dword s63, s[58:59], s25")
    for j,b in enumerate((44,46,48,50,52,54)):
        k(f"global_load_dword v{2+j}, v1, s[{b}:{b+1}]")
    srd(k, 8, 42, 1835008)
    srd(k, 16, 60, WS_SIZE)
    k("s_mov_b32 m0, s29")
    k("s_add_u32 s31, s30, 14336")
    k("buffer_load_dwordx4 v8, s[8:11], s30 offen lds")
    k("s_add_u32 m0, s29, 1024")
    k("s_nop 0")
    k("buffer_load_dwordx4 v8, s[8:11], s31 offen lds")
    srd(k, 12, 38, 1204224)
    k(f"v_mov_b32 v170, {L_FL}")
    k("v_mov_b32 v171, 1")
    for s in range(7):
        for i in range(3):
            k(f"s_add_u32 m0, s34, {L_W + s*12288 + i*1024}")
            k(f"s_add_u32 s20, s33, {s*64*2688}")
            k(f"buffer_load_dwordx4 v{vW[i]}, s[12:15], s20 offen lds")
        if s >= 2:
            k("s_waitcnt vmcnt(6)"); signal(k, 170, 171, s-2)
    vT0, vT1 = 8, 9
    vWa = [10,11,12,13]
    vU = 46
    k("v_bfe_u32 v14, v0, 2, 2")
    k("v_lshrrev_b32 v15, 5, v0")
    k("v_lshlrev_b32 v16, 6, v14")
    k("v_lshl_add_u32 v16, v15, 9, v16")
    k("v_add_u32 v16, s29, v16")
    k("v_and_b32 v17, 1, v0")
    k("v_lshl_add_u32 v16, v17, 3, v16")
    k("v_bfe_u32 v17, v0, 1, 1")
    k("v_bfe_u32 v18, v0, 4, 1")
    k("v_lshl_add_u32 v17, v18, 1, v17")
    k(f"v_lshl_add_u32 v{vU}, v17, 4, v16")
    k("v_bfe_u32 v18, v0, 3, 1")
    k("v_xor_b32 v17, v17, v18")
    k(f"v_lshl_add_u32 v{vT0}, v17, 4, v16")
    k("v_xor_b32 v17, 2, v17")
    k(f"v_lshl_add_u32 v{vT1}, v17, 4, v16")
    k(f"v_add_u32 v{vT1}, 256, v{vT1}")
    k("v_lshlrev_b32 v16, 6, v0")
    k("v_add_u32 v16, s29, v16")
    k("v_bfe_u32 v17, v0, 1, 2")
    for c in range(4):
        k(f"v_xor_b32 v18, {c}, v17")
        k(f"v_lshl_add_u32 v{vWa[c]}, v18, 4, v16")
    k("s_waitcnt lgkmcnt(0)")
    k.stamp(2)
    k("s_waitcnt vmcnt(3)"); signal(k, 170, 171, 5)
    k("s_lshl_b32 s21, s21, 4")
    k("s_lshr_b32 s62, s62, s21")
    k("s_lshl_b32 s62, s62, 16")
    k("s_lshr_b32 s63, s63, s21")
    k("s_lshl_b32 s63, s63, 16")
    k(f"v_mov_b32 v14, {hex(f2u(LOG2E))}")
    k("v_mul_f32 v14, s62, v14")
    k("v_exp_f32 v14, v14")
    k("v_cvt_pk_bf16_f32 v14, v14, v14")
    k("v_and_b32 v14, 0xffff0000, v14")
    k("v_readfirstlane_b32 s64, v14")
    k("s_waitcnt vmcnt(0)"); signal(k, 170, 171, 6)
    k.stamp(4)
    UF = 160
    for kk in range(2):
        for hf in range(2):
            k(f"ds_read_b64_tr_b16 v[{UF+4*kk+2*hf}:{UF+4*kk+2*hf+1}], v{vU} offset:{kk*1024+hf*256}")
    k("v_and_b32 v44, 31, v0")
    k("v_lshlrev_b32 v44, 12, v44")
    k("v_lshrrev_b32 v45, 5, v0")
    k("v_lshl_add_u32 v44, v45, 4, v44")
    k("s_lshl_b32 s30, s28, 17")
    k("s_lshl_b32 s20, s27, 6")
    k("s_add_u32 s30, s30, s20")
    k(f"s_add_u32 s30, s30, {WS_UT}")
    Z1, Z8, Z256, W, Z2, Z4 = 14, 16, 18, 20, 22, 24
    PR, PI = 48, 64
    LRE, LIM, HRE, HIM, ACC = 80, 96, 112, 128, 144
    def cmul(d, a, b):
        if PK:
            k(f"v_pk_mul_f32 v[{d}:{d+1}], v[{a}:{a+1}], v[{b}:{b+1}] op_sel:[0,0] op_sel_hi:[1,0]")
            k(f"v_pk_fma_f32 v[{d}:{d+1}], v[{a}:{a+1}], v[{b}:{b+1}], v[{d}:{d+1}] op_sel:[1,1,0] op_sel_hi:[0,1,1] neg_lo:[1,0,0]")
        else:
            k(f"v_mul_f32 v{d}, v{a}, v{b}")
            k(f"v_mul_f32 v{d+1}, v{a+1}, v{b}")
            k(f"v_fma_f32 v{d}, -v{a+1}, v{b+1}, v{d}")
            k(f"v_fmac_f32 v{d+1}, v{a}, v{b+1}")
    def prep(j):
        for q in range(6):
            if j == 0: k(f"v_lshlrev_b32 v{26+q}, 16, v{2+q}")
            else: k(f"v_and_b32 v{26+q}, 0xffff0000, v{2+q}")
        k("v_mul_f32 v26, s64, v26")
        k("v_mul_f32 v27, s64, v27")
        k("v_mul_f32 v28, s64, v28")
        k("v_mul_f32 v29, s64, v29")
        k(f"v_mul_f32 v26, {hex(f2u(LOG2E))}, v26")
        k(f"v_mul_f32 v27, {hex(f2u(1/(2*math.pi)))}, v27")
        cmul(W, 30, 28)
        for z, sc in ((Z1,1.0),(Z8,8.0),(Z256,256.0)):
            if sc == 1.0:
                k("v_exp_f32 v32, v26"); k("v_fract_f32 v33, v27")
            else:
                k(f"v_mul_f32 v32, {hex(f2u(sc))}, v26")
                k(f"v_mul_f32 v33, {hex(f2u(sc))}, v27")
                k("v_exp_f32 v32, v32"); k("v_fract_f32 v33, v33")
            k(f"v_cos_f32 v{z}, v33")
            k(f"v_sin_f32 v{z+1}, v33")
            k(f"v_mul_f32 v{z}, v32, v{z}")
            k(f"v_mul_f32 v{z+1}, v32, v{z+1}")
    def plane(P, F, nch):
        for c in range(nch):
            k(f"ds_write_b128 v{vWa[c]}, v[{P+4*c}:{P+4*c+3}]")
        for ks in range(4):
            k(f"ds_read_b64_tr_b16 v[{F+4*ks}:{F+4*ks+1}], v{vT0} offset:{ks*1024}")
            k(f"ds_read_b64_tr_b16 v[{F+4*ks+2}:{F+4*ks+3}], v{vT1} offset:{ks*1024}")
    T = [34, 36, 38, 40]
    def Lchain():
        k(f"v_cvt_pk_bf16_f32 v{PR}, 1.0, v{Z8}")
        k(f"v_cvt_pk_bf16_f32 v{PI}, 0, v{Z8+1}")
        prev = Z8
        for j in range(1,16):
            a, b = T[(2*j)%4], T[(2*j+1)%4]
            cmul(a, prev, Z8); cmul(b, a, Z8)
            k(f"v_cvt_pk_bf16_f32 v{PR+j}, v{a}, v{b}")
            k(f"v_cvt_pk_bf16_f32 v{PI+j}, v{a+1}, v{b+1}")
            prev = b
        plane(PR, LRE, 4); plane(PI, LIM, 4)
    def pack(j, a, b):
        k(f"v_cvt_pk_bf16_f32 v{PR+j}, v{a}, v{b}")
        k(f"v_cvt_pk_bf16_f32 v{PI+j}, -v{a+1}, -v{b+1}")
    def Hchain():
        A,B,C,D = T
        cmul(Z2, Z1, Z1); cmul(Z4, Z2, Z2)
        cmul(A, W, Z1); pack(0, W, A)
        cmul(B, A, Z1); cmul(C, B, Z1); pack(1, B, C)
        cmul(D, C, Z1); cmul(A, D, Z1); pack(2, D, A)
        cmul(B, A, Z1); cmul(C, B, Z1); pack(3, B, C)
        G = 42
        cmul(G, W, Z256); cmul(A, G, Z2); pack(4, G, A)
        cmul(B, A, Z2); cmul(C, B, Z2); pack(5, B, C)
        cmul(D, G, Z256); cmul(A, D, Z4); pack(6, D, A)
        cmul(G, D, Z256); cmul(A, G, Z4); pack(7, G, A)
        cmul(B, G, Z256); cmul(C, B, Z256); pack(8, B, C)
        cmul(D, C, Z256); cmul(A, D, Z256); pack(9, D, A)
        cmul(B, A, Z256); pack(10, B, B)
        plane(PR, HRE, 3); plane(PI, HIM, 3)
    def kmf(first):
        k("s_waitcnt lgkmcnt(0)")
        for ks in range(4):
            c = "0" if (first and ks==0) else f"v[{ACC}:{ACC+15}]"
            k(f"{MFMA} v[{ACC}:{ACC+15}], v[{HRE+4*ks}:{HRE+4*ks+3}], v[{LRE+4*ks}:{LRE+4*ks+3}], {c}")
            k(f"{MFMA} v[{ACC}:{ACC+15}], v[{HIM+4*ks}:{HIM+4*ks+3}], v[{LIM+4*ks}:{LIM+4*ks+3}], v[{ACC}:{ACC+15}]")
    prep(0)
    k("s_waitcnt lgkmcnt(0)")
    k(f"buffer_store_dwordx4 v[{UF}:{UF+3}], v44, s[16:19], s30 offen")
    k(f"buffer_store_dwordx4 v[{UF+4}:{UF+7}], v44, s[16:19], s30 offen offset:32")
    k.stamp(5); Lchain(); k.stamp(6); Hchain(); prep(1); k.stamp(7); kmf(True); Lchain(); Hchain(); k.stamp(8)
    k("v_and_b32 v26, 31, v0")
    k("v_lshrrev_b32 v27, 5, v0")
    k("v_lshlrev_b32 v28, 5, v26")
    k("v_lshl_add_u32 v28, v27, 4, v28")
    k("v_add_u32 v28, s29, v28")
    k("v_lshlrev_b32 v29, 4, v26")
    k("v_add_u32 v29, 1024, v29")
    k("v_add_u32 v30, 8, v29")
    k("s_mov_b32 exec_lo, 0")
    k("v_lshlrev_b32 v29, 3, v26")
    k("v_add_u32 v29, 1536, v29")
    k("v_add_u32 v30, 256, v29")
    k("s_mov_b32 exec_lo, -1")
    k("v_add_u32 v29, s29, v29")
    k("v_add_u32 v30, s29, v30")
    k("v_lshlrev_b32 v31, 2, v26")
    k("v_lshl_add_u32 v31, v27, 9, v31")
    k("v_add_u32 v31, s29, v31")
    k(f"v_mov_b32 v32, {L_FL+32}")
    k("s_and_b32 s20, s3, 1")
    k("s_lshl_b32 s20, s20, 2")
    k("v_add_u32 v32, s20, v32")
    k("v_mov_b32 v33, 1")
    kmf(False)
    k(f"ds_write_b128 v28, v[{ACC}:{ACC+3}]")
    k(f"ds_write_b64 v29, v[{ACC+4}:{ACC+5}]")
    k(f"ds_write_b64 v30, v[{ACC+6}:{ACC+7}]")
    for i in range(4): k(f"ds_write_b32 v31, v{ACC+8+i} offset:{2048+128*i}")
    signal(k, 32, 33, 0)
    k.stamp(9)
    k("s_and_b32 s20, s3, 1")
    k("s_lshl_b32 s20, s20, 12")
    k(f"s_add_u32 s31, s20, {L_KB}")
    k(f"s_mul_i32 s30, s22, {KR_STRIDE}")
    k(f"s_add_u32 s30, s30, {WS_KR}")
    k("v_lshlrev_b32 v34, 4, v0")
    k("v_sub_u32 v34, 4080, v34")
    k("v_lshlrev_b32 v35, 2, v0")
    k("v_add_u32 v35, s31, v35")
    k("v_and_b32 v36, 1, v0")
    k("v_cmp_eq_u32 s[66:67], 1, v36")
    poll(k, 32, 26, 0, 2)
    k.stamp(10)
    k("s_cmp_eq_u32 s23, 1")
    k("s_cbranch_scc1 k1_exp1")
    def t4(i, R):
        off = 512 + 64*(i-2)
        k(f"v_add_u32 v37, {off*4}, v35")
        k(f"ds_read2_b32 v[{R}:{R+1}], v37 offset0:0 offset1:1")
        k(f"v_add_u32 v37, 8192, v37")
        k(f"ds_read2_b32 v[{R+2}:{R+3}], v37 offset0:0 offset1:1")
    def t4fin(i, R, O):
        k(f"v_add_f32 v{R}, v{R}, v{R+2}")
        k(f"v_add_f32 v{R+1}, v{R+1}, v{R+3}")
        k(f"v_cndmask_b32 v{R+2}, v{R}, v{R+1}, s[66:67]")
        k(f"v_cvt_pk_bf16_f32 v{O}, v{R+1}, v{R+1}")
        k(f"v_cvt_pk_bf16_f32 v{O+1}, v{R+1}, v{R+2}")
        k(f"v_cvt_pk_bf16_f32 v{O+2}, v{R}, v{R}")
        k(f"v_cvt_pk_bf16_f32 v{O+3}, v{R}, v{R}")
        k(f"s_sub_u32 s20, s30, {1024*i}")
        k(f"buffer_store_dwordx4 v[{O}:{O+3}], v34, s[16:19], s20 offen")
    k("v_lshlrev_b32 v38, 5, v0")
    k("s_mov_b32 exec_lo, 0")
    k("v_lshlrev_b32 v38, 4, v0")
    k("v_add_u32 v38, 512, v38")
    k("s_mov_b32 exec_lo, -1")
    k("v_add_u32 v38, s31, v38")
    k("ds_read_b128 v[48:51], v38")
    k("ds_read_b128 v[52:55], v38 offset:16")
    k("ds_read_b128 v[56:59], v38 offset:8192")
    k("ds_read_b128 v[60:63], v38 offset:8208")
    t4(2, 64)
    k("s_waitcnt lgkmcnt(0)")
    for e in range(8): k(f"v_add_f32 v{48+e}, v{48+e}, v{56+e}")
    k("s_mov_b32 exec_lo, 0")
    pat = [0,0,1,2,2,2,3,4]
    for e in range(7,0,-1): k(f"v_mov_b32 v{48+e}, v{48+pat[e]}")
    k("s_mov_b64 exec, 1")
    k("v_add_f32 v48, s63, v48")
    k("s_mov_b64 exec, -1")
    for i in range(4): k(f"v_cvt_pk_bf16_f32 v{56+i}, v{55-2*i}, v{54-2*i}")
    k("buffer_store_dwordx4 v[56:59], v34, s[16:19], s30 offen")
    t4fin(2, 64, 68)
    k.end()
    k("k1_exp1:")
    k("v_lshlrev_b32 v38, 3, v0")
    k("v_add_u32 v38, s31, v38")
    k("ds_read_b64 v[48:49], v38 offset:1536")
    k("ds_read_b32 v50, v38 offset:1544")
    k(f"ds_read_b64 v[52:53], v38 offset:{1536+8192}")
    k(f"ds_read_b32 v54, v38 offset:{1544+8192}")
    t4(3, 64)
    for i in range(4): k(f"v_mov_b32 v{72+i}, 0")
    k("v_lshlrev_b32 v39, 4, v0")
    k("s_add_u32 s21, s30, 4096")
    k("s_mov_b64 exec, 0xff")
    k("buffer_store_dwordx4 v[72:75], v39, s[16:19], s21 offen")
    k("s_mov_b64 exec, -1")
    k("s_waitcnt lgkmcnt(0)")
    for e in range(3): k(f"v_add_f32 v{48+e}, v{48+e}, v{52+e}")
    k("v_cvt_pk_bf16_f32 v56, v50, v50")
    k("v_cvt_pk_bf16_f32 v57, v49, v49")
    k("v_cvt_pk_bf16_f32 v58, v49, v48")
    k("v_cvt_pk_bf16_f32 v59, v48, v48")
    k("s_sub_u32 s20, s30, 1024")
    k("buffer_store_dwordx4 v[56:59], v34, s[16:19], s20 offen")
    t4fin(3, 64, 68)
    k.end()
    k("k1_end:")
    k("s_endpgm")
    return k, 172, LDS1
```

```python
from dsl import *
from common import *
import os

L_W = 0
L_X = 86016
NSLOT = 3
L_KB = L_X + 4*NSLOT*4096
L_FL = L_KB + 4*4096
LDS1 = L_FL + 64

def signal(k, vfl, vone, idx):
    k("s_mov_b64 exec, 1")
    k(f"ds_add_u32 v{vfl}, v{vone} offset:{4*idx}")
    k("s_mov_b64 exec, -1")
def poll(k, vfl, vt, idx, n):
    L = k.lab("poll")
    k(f"{L}:")
    k(f"ds_read_b32 v{vt}, v{vfl} offset:{4*idx}")
    k("s_waitcnt lgkmcnt(0)")
    k(f"v_readfirstlane_b32 s20, v{vt}")
    k(f"s_cmp_lt_u32 s20, {n}")
    k(f"s_cbranch_scc1 {L}")

def gen_k1(PK=False):
    k = K("k1_kernel")
    k("s_cmp_ge_u32 s2, 224")
    k("s_cbranch_scc1 k1_end")
    k("s_load_dwordx16 s[36:51], s[0:1], 0")
    k("s_load_dwordx8 s[52:59], s[0:1], 64")
    k("s_load_dwordx2 s[60:61], s[0:1], 112")
    k("v_lshrrev_b32 v1, 6, v0")
    k("v_and_b32 v0, 63, v0")
    k("v_readfirstlane_b32 s3, v1")
    k("v_lshlrev_b32 v1, 2, v0")
    k("v_and_b32 v2, 60, v1")
    k(f"v_add_u32 v2, {L_FL}, v2")
    k("v_mov_b32 v3, 0")
    k("ds_write_b32 v2, v3")
    k.stamp_init(0, 60)
    k("s_and_b32 s6, s2, 7")
    k("s_lshr_b32 s7, s2, 3")
    k("s_and_b32 s4, s6, 1")
    k("s_mul_i32 s4, s4, 7")
    k("s_lshr_b32 s20, s7, 2")
    k("s_add_u32 s4, s4, s20")
    k("s_lshr_b32 s5, s6, 1")
    k("s_lshl_b32 s5, s5, 2")
    k("s_and_b32 s20, s7, 3")
    k("s_add_u32 s5, s5, s20")
    k("s_cmp_ge_u32 s3, 4")
    k("s_cbranch_scc1 k1_kgen")
    vX0, vX1 = 3, 4
    k("v_lshrrev_b32 v5, 3, v0")
    k("v_mul_u32_u24 v5, 896, v5")
    k("v_lshrrev_b32 v6, 4, v0")
    k("v_and_b32 v7, 7, v0")
    k("v_xor_b32 v6, v6, v7")
    k(f"v_lshl_add_u32 v{vX0}, v6, 4, v5")
    k("v_xor_b32 v6, 4, v6")
    k(f"v_lshl_add_u32 v{vX1}, v6, 4, v5")
    k("s_lshl_b32 s23, s5, 2")
    k("s_add_u32 s23, s23, s3")
    k("s_mul_i32 s24, s23, 28672")
    k(f"s_mul_i32 s25, s3, {NSLOT*4096}")
    k(f"s_add_u32 s25, s25, {L_X}")
    k("s_waitcnt lgkmcnt(0)")
    k("s_barrier")
    k.stamp(1)
    k.diag_start(0, 60)
    srd(k, 8, 36, 1835008)
    srd(k, 16, 60, WS_SIZE)
    def dmaX(s):
        for i in range(4):
            k(f"s_add_u32 m0, s25, {(s%NSLOT)*4096 + i*1024}")
            k(f"s_add_u32 s20, s24, {i*8*896 + s*128}")
            k(f"buffer_load_dwordx4 v{vX1 if i&1 else vX0}, s[8:11], s20 offen lds")
    for s in range(NSLOT): dmaX(s)
    k.stamp(2)
    vXr = [8,9,10,11]; vT, vT2, vFl, vF, vTmp = 12, 13, 14, 15, 5
    k("v_and_b32 v5, 31, v0")
    k("v_lshrrev_b32 v6, 5, v0")
    k("v_bfe_u32 v7, v0, 1, 3")
    k("v_xor_b32 v6, v6, v7")
    k("v_lshlrev_b32 v5, 7, v5")
    k("v_add_u32 v5, s25, v5")
    for ks in range(4):
        k(f"v_xor_b32 v7, {2*ks}, v6")
        k(f"v_lshl_add_u32 v{vXr[ks]}, v7, 4, v5")
    k("v_bfe_u32 v5, v0, 2, 2")
    k("v_lshrrev_b32 v6, 5, v0")
    k("v_lshl_add_u32 v5, v6, 3, v5")
    k(f"v_mul_u32_u24 v{vT}, 192, v5")
    k("v_and_b32 v5, 3, v0")
    k(f"v_lshl_add_u32 v{vT}, v5, 3, v{vT}")
    k("v_bfe_u32 v5, v0, 4, 1")
    k(f"v_lshl_add_u32 v{vT}, v5, 5, v{vT}")
    k(f"v_add_u32 v{vT2}, {L_W+14*3072}, v{vT}")
    k(f"v_mov_b32 v{vFl}, {L_FL}")
    k("s_mul_i32 s6, s4, 3")
    k("s_cmp_ge_u32 s4, 10")
    k("s_cbranch_scc1 k1_v2")
    k("s_cmp_eq_u32 s4, 9")
    k("s_cbranch_scc1 k1_v1")
    D = [16, 32, 48]
    FB = [64, 80]
    vA = [96, 98, 100]; vPad = 102
    PADV = 104
    for var, isV in enumerate(((0,0,0),(0,1,1),(1,1,1))):
        k(f"k1_v{var}:")
        for i in range(3):
            sB, sSc, sP, sM, sH = 26+i, 29+i, 62+2*i, 40+4*i, 32+i
            k(f"s_add_u32 s20, s6, {i}")
            if isV[i]:
                k("s_sub_u32 s20, s20, 28")
                k("s_lshl_b32 s20, s20, 5")
                k("v_and_b32 v5, 31, v0")
                k("v_add_u32 v5, s20, v5")
                k("v_mul_u32_u24 v6, 2341, v5")
                k("v_lshrrev_b32 v6, 16, v6")
                k("v_mul_u32_u24 v7, 28, v6")
                k("v_sub_u32 v5, v5, v7")
                k("v_and_b32 v7, 32, v0")
                k("v_add_u32 v5, v5, v7")
                k("v_lshlrev_b32 v5, 4, v5")
                k(f"v_lshl_add_u32 v{vA[i]}, v6, 18, v5")
                k(f"s_lshl_b32 s{sB}, s23, 12")
                k(f"s_add_u32 s{sB}, s{sB}, {WS_KV+2048}")
            else:
                k("s_cmp_ge_u32 s20, 14")
                k("s_cselect_b32 s21, 14, 0")
                k("s_sub_u32 s20, s20, s21")
                k("s_cmp_ge_u32 s21, 14")
                k(f"s_cselect_b32 s{sH}, 18, 17")
                k(f"s_cselect_b32 s{sSc}, 1.0, {hex(f2u(28**-0.5*LOG2E))}")
                k(f"s_cselect_b32 s{sP}, 0x3f803f80, 0")
                k(f"s_cselect_b32 s{sP+1}, 0x3f80, 0")
                k(f"s_cselect_b32 s21, {WS_KV}, {WS_QF}")
                k(f"s_sub_u32 s22, s{sH}, 6")
                k(f"s_lshl_b32 s{sB}, s23, s22")
                k(f"s_add_u32 s{sB}, s{sB}, s21")
                k("s_lshl_b32 s20, s20, 2")
                for j in range(2):
                    k("v_lshrrev_b32 v5, 5, v0")
                    k(f"v_add3_u32 v5, v5, s20, {2*j}")
                    k("v_mul_u32_u24 v6, 37, v5")
                    k("v_lshrrev_b32 v6, 8, v6")
                    k("v_add_u32 v5, v5, v6")
                    k("v_and_b32 v6, 7, v5")
                    k(f"v_cmp_eq_u32 s[{sM+2*j}:{sM+2*j+1}], 3, v6")
                    k("v_lshrrev_b32 v6, 2, v5")
                    k(f"v_lshlrev_b32 v6, s{sH}, v6")
                    k("v_and_b32 v5, 3, v5")
                    k("v_lshl_add_u32 v6, v5, 9, v6")
                    k("v_and_b32 v5, 31, v0")
                    k(f"v_lshl_add_u32 v{vA[i]+j}, v5, 4, v6")
        if var:
            if var == 1:
                k("s_mov_b32 s20, 0"); k("s_mov_b32 s21, 64")
            else:
                k("s_mul_i32 s20, s4, 96"); k("s_sub_u32 s20, s20, 896"); k("s_add_u32 s21, s20, 96")
                k("s_mul_i32 s20, s20, 2341"); k("s_lshr_b32 s20, s20, 16")
            k("v_lshrrev_b32 v5, 4, v0")
            k("v_add_u32 v5, s20, v5")
            k("v_mul_u32_u24 v6, 28, v5")
            k("v_add_u32 v6, 27, v6")
            k("v_cmp_gt_u32 s[56:57], s21, v6")
            k("v_bfe_u32 v6, v0, 2, 2")
            k("v_lshlrev_b32 v6, 9, v6")
            k("v_lshl_add_u32 v6, v5, 18, v6")
            k("v_and_b32 v5, 3, v0")
            k("v_cmp_eq_u32 vcc, 0, v5")
            k("v_lshl_add_u32 v6, v5, 4, v6")
            k(f"v_add_u32 v{vPad}, 448, v6")
            k("v_mov_b32 v5, 0x3f803f80")
            for e in range(4): k(f"v_cndmask_b32 v{PADV+e}, 0, v5, vcc")
            k("s_mov_b64 exec, s[56:57]")
            k(f"buffer_store_dwordx4 v[{PADV}:{PADV+3}], v{vPad}, s[16:19], s28 offen")
            k("s_mov_b64 exec, -1")
        nx = 1 if var else 0
        def reads(ksg):
            s, ks = ksg//4, ksg%4
            b = FB[ksg&1]
            k(f"ds_read_b128 v[{b}:{b+3}], v{vXr[ks]} offset:{(s%NSLOT)*4096}")
            for m in range(3):
                for hf in range(2):
                    if ksg < 14: a, off = vT, L_W + ksg*3072 + hf*768 + m*64
                    else: a, off = vT2, (ksg-14)*3072 + hf*768 + m*64
                    r = b+4+4*m+2*hf
                    k(f"ds_read_b64_tr_b16 v[{r}:{r+1}], v{a} offset:{off}")
        def mfmas(ksg):
            b = FB[ksg&1]
            x = f"v[{b}:{b+3}]"
            for m in range(3):
                c = "0" if ksg==0 else f"v[{D[m]}:{D[m]+15}]"
                w = f"v[{b+4+4*m}:{b+7+4*m}]"
                k(f"{MFMA} v[{D[m]}:{D[m]+15}], {x if isV[m] else w}, {w if isV[m] else x}, {c}")
        for s in range(7):
            if s > 0:
                k("s_waitcnt lgkmcnt(0)")
                k(f"v_readfirstlane_b32 s35, v{vF}")
                mfmas(4*s-1)
                if s-1+NSLOT < 7: dmaX(s-1+NSLOT)
                L = k.lab("ok")
                k("s_cmp_ge_u32 s35, 4")
                k(f"s_cbranch_scc1 {L}")
                poll(k, vFl, vTmp, s, 4)
                k(f"{L}:")
            else:
                poll(k, vFl, vTmp, 0, 4)
            yo = 4*(min(6, s-1+NSLOT if s else NSLOT-1) - s) + (nx if s < NSLOT else 0)
            k(f"s_waitcnt vmcnt({yo})")
            k.stamp(4+s)
            reads(4*s)
            for ks in range(1,4):
                if ks == 3 and s < 6: k(f"ds_read_b32 v{vF}, v{vFl} offset:{4*(s+1)}")
                reads(4*s+ks)
                k(f"s_waitcnt lgkmcnt({8 if (ks==3 and s<6) else 7})")
                mfmas(4*s+ks-1)
        k("s_waitcnt lgkmcnt(0)")
        mfmas(27)
        k.stamp(11)
        for i in range(3):
            sB, sSc, sP, sM, sH = 26+i, 29+i, 62+2*i, 40+4*i, 32+i
            P = 64+12*i
            if not isV[i]:
                for r in range(0,16,2): k(f"v_pk_mul_f32 v[{D[i]+r}:{D[i]+r+1}], v[{D[i]+r}:{D[i]+r+1}], s[{sSc}:{sSc+1}] op_sel_hi:[1,0]" if sSc%2==0 else f"v_pk_mul_f32 v[{D[i]+r}:{D[i]+r+1}], v[{D[i]+r}:{D[i]+r+1}], s[{sSc-1}:{sSc}] op_sel:[0,1] op_sel_hi:[1,1]")
            for q in range(8): k(f"v_cvt_pk_bf16_f32 v{P+q}, v{D[i]+2*q}, v{D[i]+2*q+1}")
            if isV[i]:
                k(f"buffer_store_dwordx4 v[{P}:{P+3}], v{vA[i]}, s[16:19], s{sB} offen")
                k(f"buffer_store_dwordx4 v[{P+4}:{P+7}], v{vA[i]}, s[16:19], s{sB} offen offset:1024")
            else:
                for a in (0, 1, 4, 5): k(f"v_permlane32_swap_b32 v{P+a}, v{P+a+2}")
                k(f"v_mov_b32 v{P+10}, s{sP}")
                k(f"v_mov_b32 v{P+11}, s{sP+1}")
                k(f"s_lshl_b32 s21, 1, s{sH}")
                k(f"s_add_u32 s21, s21, s{sB}")
                for j in range(2):
                    L = k.lab("nomix")
                    R = P+4*j
                    k(f"s_mov_b64 exec, s[{sM+2*j}:{sM+2*j+1}]")
                    k(f"s_cbranch_execz {L}")
                    k(f"v_mov_b32 v{P+8}, v{R+2}")
                    k(f"v_mov_b32 v{P+9}, v{R+3}")
                    k(f"v_mov_b32 v{R+2}, v{P+10}")
                    k(f"v_mov_b32 v{R+3}, v{P+11}")
                    k(f"buffer_store_dwordx4 v[{P+8}:{P+11}], v{vA[i]+j}, s[16:19], s21 offen")
                    k(f"{L}:")
                    k("s_mov_b64 exec, -1")
                    k(f"buffer_store_dwordx4 v[{R}:{R+3}], v{vA[i]+j}, s[16:19], s{sB} offen")
        k.end()

    k("k1_kgen:")
    k("s_sub_u32 s3, s3, 4")
    vW = [47, 168, 169]
    for i in range(3):
        k(f"v_add_u32 v8, {64*i}, v0")
        k("v_mul_u32_u24 v9, 171, v8")
        k("v_lshrrev_b32 v9, 11, v9")
        k("v_mul_u32_u24 v10, 12, v9")
        k("v_sub_u32 v8, v8, v10")
        k("v_mul_u32_u24 v9, 2688, v9")
        k(f"v_lshl_add_u32 v{vW[i]}, v8, 4, v9")
    k("s_mul_i32 s33, s3, 43008")
    k("s_mul_i32 s20, s4, 192")
    k("s_add_u32 s33, s33, s20")
    k("s_mul_i32 s34, s3, 3072")
    k("s_and_b32 s21, s3, 1")
    k("s_lshl_b32 s22, s2, 1")
    k("s_add_u32 s22, s22, s21")
    k("s_lshr_b32 s23, s3, 1")
    k("s_lshl_b32 s24, s22, 9")
    k("s_lshl_b32 s20, s23, 8")
    k("s_add_u32 s24, s24, s20")
    k("v_add_u32 v1, s24, v1")
    k("s_lshl_b32 s25, s2, 2")
    k("s_lshl_b32 s26, s2, 2")
    k("s_add_u32 s26, s26, s3")
    k("s_mul_i32 s27, s26, 4682")
    k("s_lshr_b32 s27, s27, 16")
    k("s_mul_i32 s20, s27, 14")
    k("s_sub_u32 s28, s26, s20")
    k("s_lshl_b32 s29, s3, 12")
    k(f"s_add_u32 s29, s29, {L_KB}")
    k("v_lshrrev_b32 v8, 2, v0")
    k("v_mul_u32_u24 v8, 896, v8")
    k("v_and_b32 v9, 3, v0")
    k("v_lshl_add_u32 v8, v9, 4, v8")
    k("s_mul_i32 s30, s27, 28672")
    k("s_lshl_b32 s20, s28, 6")
    k("s_add_u32 s30, s30, s20")
    k("s_waitcnt lgkmcnt(0)")
    k("s_barrier")
    k.stamp(1)
    k("s_load_dword s62, s[56:57], s25")
    k("s_load_dword s63, s[58:59], s25")
    for j,b in enumerate((44,46,48,50,52,54)):
        k(f"global_load_dword v{2+j}, v1, s[{b}:{b+1}]")
    srd(k, 8, 42, 1835008)
    srd(k, 16, 60, WS_SIZE)
    k("s_mov_b32 m0, s29")
    k("s_add_u32 s31, s30, 14336")
    k("buffer_load_dwordx4 v8, s[8:11], s30 offen lds")
    k("s_add_u32 m0, s29, 1024")
    k("s_nop 0")
    k("buffer_load_dwordx4 v8, s[8:11], s31 offen lds")
    if int(os.environ.get('PF1','0')):
        k("v_lshlrev_b32 v170, 16, v0")
        k("s_lshl_b32 s20, s3, 22")
        k("buffer_load_dword v172, v170, s[16:19], s20 offen")
    srd(k, 12, 38, 1204224)
    k(f"v_mov_b32 v170, {L_FL}")
    k("v_mov_b32 v171, 1")
    for s in range(7):
        for i in range(3):
            k(f"s_add_u32 m0, s34, {L_W + s*12288 + i*1024}")
            k(f"s_add_u32 s20, s33, {s*64*2688}")
            k(f"buffer_load_dwordx4 v{vW[i]}, s[12:15], s20 offen lds")
        if s >= 2:
            k("s_waitcnt vmcnt(6)"); signal(k, 170, 171, s-2)
    vT0, vT1 = 8, 9
    vWa = [10,11,12,13]
    vU = 46
    k("v_bfe_u32 v14, v0, 2, 2")
    k("v_lshrrev_b32 v15, 5, v0")
    k("v_lshlrev_b32 v16, 6, v14")
    k("v_lshl_add_u32 v16, v15, 9, v16")
    k("v_add_u32 v16, s29, v16")
    k("v_and_b32 v17, 1, v0")
    k("v_lshl_add_u32 v16, v17, 3, v16")
    k("v_bfe_u32 v17, v0, 1, 1")
    k("v_bfe_u32 v18, v0, 4, 1")
    k("v_lshl_add_u32 v17, v18, 1, v17")
    k(f"v_lshl_add_u32 v{vU}, v17, 4, v16")
    k("v_bfe_u32 v18, v0, 3, 1")
    k("v_xor_b32 v17, v17, v18")
    k(f"v_lshl_add_u32 v{vT0}, v17, 4, v16")
    k("v_xor_b32 v17, 2, v17")
    k(f"v_lshl_add_u32 v{vT1}, v17, 4, v16")
    k(f"v_add_u32 v{vT1}, 256, v{vT1}")
    k("v_lshlrev_b32 v16, 6, v0")
    k("v_add_u32 v16, s29, v16")
    k("v_bfe_u32 v17, v0, 1, 2")
    for c in range(4):
        k(f"v_xor_b32 v18, {c}, v17")
        k(f"v_lshl_add_u32 v{vWa[c]}, v18, 4, v16")
    k("s_waitcnt lgkmcnt(0)")
    k.stamp(2)
    k("s_waitcnt vmcnt(3)"); signal(k, 170, 171, 5)
    k("s_lshl_b32 s21, s21, 4")
    k("s_lshr_b32 s62, s62, s21")
    k("s_lshl_b32 s62, s62, 16")
    k("s_lshr_b32 s63, s63, s21")
    k("s_lshl_b32 s63, s63, 16")
    k(f"v_mov_b32 v14, {hex(f2u(LOG2E))}")
    k("v_mul_f32 v14, s62, v14")
    k("v_exp_f32 v14, v14")
    k("v_cvt_pk_bf16_f32 v14, v14, v14")
    k("v_and_b32 v14, 0xffff0000, v14")
    k("v_readfirstlane_b32 s64, v14")
    k("s_waitcnt vmcnt(0)"); signal(k, 170, 171, 6)
    k.stamp(4)
    UF = 160
    for kk in range(2):
        for hf in range(2):
            k(f"ds_read_b64_tr_b16 v[{UF+4*kk+2*hf}:{UF+4*kk+2*hf+1}], v{vU} offset:{kk*1024+hf*256}")
    k("v_and_b32 v44, 31, v0")
    k("v_lshlrev_b32 v44, 12, v44")
    k("v_lshrrev_b32 v45, 5, v0")
    k("v_lshl_add_u32 v44, v45, 4, v44")
    k("s_lshl_b32 s30, s28, 17")
    k("s_lshl_b32 s20, s27, 6")
    k("s_add_u32 s30, s30, s20")
    k(f"s_add_u32 s30, s30, {WS_UT}")
    Z1, Z8, Z256, W, Z2, Z4 = 14, 16, 18, 20, 22, 24
    PR, PI = 48, 64
    LRE, LIM, HRE, HIM, ACC = 80, 96, 112, 128, 144
    def cmul(d, a, b):
        if PK:
            k(f"v_pk_mul_f32 v[{d}:{d+1}], v[{a}:{a+1}], v[{b}:{b+1}] op_sel:[0,0] op_sel_hi:[1,0]")
            k(f"v_pk_fma_f32 v[{d}:{d+1}], v[{a}:{a+1}], v[{b}:{b+1}], v[{d}:{d+1}] op_sel:[1,1,0] op_sel_hi:[0,1,1] neg_lo:[1,0,0]")
        else:
            k(f"v_mul_f32 v{d}, v{a}, v{b}")
            k(f"v_mul_f32 v{d+1}, v{a+1}, v{b}")
            k(f"v_fma_f32 v{d}, -v{a+1}, v{b+1}, v{d}")
            k(f"v_fmac_f32 v{d+1}, v{a}, v{b+1}")
    def prep(j):
        for q in range(6):
            if j == 0: k(f"v_lshlrev_b32 v{26+q}, 16, v{2+q}")
            else: k(f"v_and_b32 v{26+q}, 0xffff0000, v{2+q}")
        k("v_mul_f32 v26, s64, v26")
        k("v_mul_f32 v27, s64, v27")
        k("v_mul_f32 v28, s64, v28")
        k("v_mul_f32 v29, s64, v29")
        k(f"v_mul_f32 v26, {hex(f2u(LOG2E))}, v26")
        k(f"v_mul_f32 v27, {hex(f2u(1/(2*math.pi)))}, v27")
        cmul(W, 30, 28)
        for z, sc in ((Z1,1.0),(Z8,8.0),(Z256,256.0)):
            if sc == 1.0:
                k("v_exp_f32 v32, v26"); k("v_fract_f32 v33, v27")
            else:
                k(f"v_mul_f32 v32, {hex(f2u(sc))}, v26")
                k(f"v_mul_f32 v33, {hex(f2u(sc))}, v27")
                k("v_exp_f32 v32, v32"); k("v_fract_f32 v33, v33")
            k(f"v_cos_f32 v{z}, v33")
            k(f"v_sin_f32 v{z+1}, v33")
            k(f"v_mul_f32 v{z}, v32, v{z}")
            k(f"v_mul_f32 v{z+1}, v32, v{z+1}")
    def plane(P, F, nch):
        for c in range(nch):
            k(f"ds_write_b128 v{vWa[c]}, v[{P+4*c}:{P+4*c+3}]")
        for ks in range(4):
            k(f"ds_read_b64_tr_b16 v[{F+4*ks}:{F+4*ks+1}], v{vT0} offset:{ks*1024}")
            k(f"ds_read_b64_tr_b16 v[{F+4*ks+2}:{F+4*ks+3}], v{vT1} offset:{ks*1024}")
    T = [34, 36, 38, 40]
    def Lchain():
        k(f"v_cvt_pk_bf16_f32 v{PR}, 1.0, v{Z8}")
        k(f"v_cvt_pk_bf16_f32 v{PI}, 0, v{Z8+1}")
        prev = Z8
        for j in range(1,16):
            a, b = T[(2*j)%4], T[(2*j+1)%4]
            cmul(a, prev, Z8); cmul(b, a, Z8)
            k(f"v_cvt_pk_bf16_f32 v{PR+j}, v{a}, v{b}")
            k(f"v_cvt_pk_bf16_f32 v{PI+j}, v{a+1}, v{b+1}")
            prev = b
        plane(PR, LRE, 4); plane(PI, LIM, 4)
    def pack(j, a, b):
        k(f"v_cvt_pk_bf16_f32 v{PR+j}, v{a}, v{b}")
        k(f"v_cvt_pk_bf16_f32 v{PI+j}, -v{a+1}, -v{b+1}")
    def Hchain():
        A,B,C,D = T
        cmul(Z2, Z1, Z1); cmul(Z4, Z2, Z2)
        cmul(A, W, Z1); pack(0, W, A)
        cmul(B, A, Z1); cmul(C, B, Z1); pack(1, B, C)
        cmul(D, C, Z1); cmul(A, D, Z1); pack(2, D, A)
        cmul(B, A, Z1); cmul(C, B, Z1); pack(3, B, C)
        G = 42
        cmul(G, W, Z256); cmul(A, G, Z2); pack(4, G, A)
        cmul(B, A, Z2); cmul(C, B, Z2); pack(5, B, C)
        cmul(D, G, Z256); cmul(A, D, Z4); pack(6, D, A)
        cmul(G, D, Z256); cmul(A, G, Z4); pack(7, G, A)
        cmul(B, G, Z256); cmul(C, B, Z256); pack(8, B, C)
        cmul(D, C, Z256); cmul(A, D, Z256); pack(9, D, A)
        cmul(B, A, Z256); pack(10, B, B)
        plane(PR, HRE, 3); plane(PI, HIM, 3)
    def kmf(first):
        k("s_waitcnt lgkmcnt(0)")
        for ks in range(4):
            c = "0" if (first and ks==0) else f"v[{ACC}:{ACC+15}]"
            k(f"{MFMA} v[{ACC}:{ACC+15}], v[{HRE+4*ks}:{HRE+4*ks+3}], v[{LRE+4*ks}:{LRE+4*ks+3}], {c}")
            k(f"{MFMA} v[{ACC}:{ACC+15}], v[{HIM+4*ks}:{HIM+4*ks+3}], v[{LIM+4*ks}:{LIM+4*ks+3}], v[{ACC}:{ACC+15}]")
    prep(0)
    k("s_waitcnt lgkmcnt(0)")
    k(f"buffer_store_dwordx4 v[{UF}:{UF+3}], v44, s[16:19], s30 offen")
    k(f"buffer_store_dwordx4 v[{UF+4}:{UF+7}], v44, s[16:19], s30 offen offset:32")
    k.stamp(5); Lchain(); k.stamp(6); Hchain(); prep(1); k.stamp(7); kmf(True); Lchain(); Hchain(); k.stamp(8)
    k("v_and_b32 v26, 31, v0")
    k("v_lshrrev_b32 v27, 5, v0")
    k("v_lshlrev_b32 v28, 5, v26")
    k("v_lshl_add_u32 v28, v27, 4, v28")
    k("v_add_u32 v28, s29, v28")
    k("v_lshlrev_b32 v29, 4, v26")
    k("v_add_u32 v29, 1024, v29")
    k("v_add_u32 v30, 8, v29")
    k("s_mov_b32 exec_lo, 0")
    k("v_lshlrev_b32 v29, 3, v26")
    k("v_add_u32 v29, 1536, v29")
    k("v_add_u32 v30, 256, v29")
    k("s_mov_b32 exec_lo, -1")
    k("v_add_u32 v29, s29, v29")
    k("v_add_u32 v30, s29, v30")
    k("v_lshlrev_b32 v31, 2, v26")
    k("v_lshl_add_u32 v31, v27, 9, v31")
    k("v_add_u32 v31, s29, v31")
    k(f"v_mov_b32 v32, {L_FL+32}")
    k("s_and_b32 s20, s3, 1")
    k("s_lshl_b32 s20, s20, 2")
    k("v_add_u32 v32, s20, v32")
    k("v_mov_b32 v33, 1")
    kmf(False)
    k(f"ds_write_b128 v28, v[{ACC}:{ACC+3}]")
    k(f"ds_write_b64 v29, v[{ACC+4}:{ACC+5}]")
    k(f"ds_write_b64 v30, v[{ACC+6}:{ACC+7}]")
    for i in range(4): k(f"ds_write_b32 v31, v{ACC+8+i} offset:{2048+128*i}")
    signal(k, 32, 33, 0)
    k.stamp(9)
    k("s_and_b32 s20, s3, 1")
    k("s_lshl_b32 s20, s20, 12")
    k(f"s_add_u32 s31, s20, {L_KB}")
    k(f"s_mul_i32 s30, s22, {KR_STRIDE}")
    k(f"s_add_u32 s30, s30, {WS_KR}")
    k("v_lshlrev_b32 v34, 4, v0")
    k("v_sub_u32 v34, 4080, v34")
    k("v_lshlrev_b32 v35, 2, v0")
    k("v_add_u32 v35, s31, v35")
    k("v_and_b32 v36, 1, v0")
    k("v_cmp_eq_u32 s[66:67], 1, v36")
    poll(k, 32, 26, 0, 2)
    k.stamp(10)
    k("s_cmp_eq_u32 s23, 1")
    k("s_cbranch_scc1 k1_exp1")
    def t4(i, R):
        off = 512 + 64*(i-2)
        k(f"v_add_u32 v37, {off*4}, v35")
        k(f"ds_read2_b32 v[{R}:{R+1}], v37 offset0:0 offset1:1")
        k(f"v_add_u32 v37, 8192, v37")
        k(f"ds_read2_b32 v[{R+2}:{R+3}], v37 offset0:0 offset1:1")
    def t4fin(i, R, O):
        k(f"v_add_f32 v{R}, v{R}, v{R+2}")
        k(f"v_add_f32 v{R+1}, v{R+1}, v{R+3}")
        k(f"v_cndmask_b32 v{R+2}, v{R}, v{R+1}, s[66:67]")
        k(f"v_cvt_pk_bf16_f32 v{O}, v{R+1}, v{R+1}")
        k(f"v_cvt_pk_bf16_f32 v{O+1}, v{R+1}, v{R+2}")
        k(f"v_cvt_pk_bf16_f32 v{O+2}, v{R}, v{R}")
        k(f"v_cvt_pk_bf16_f32 v{O+3}, v{R}, v{R}")
        k(f"s_sub_u32 s20, s30, {1024*i}")
        k(f"buffer_store_dwordx4 v[{O}:{O+3}], v34, s[16:19], s20 offen")
    k("v_lshlrev_b32 v38, 5, v0")
    k("s_mov_b32 exec_lo, 0")
    k("v_lshlrev_b32 v38, 4, v0")
    k("v_add_u32 v38, 512, v38")
    k("s_mov_b32 exec_lo, -1")
    k("v_add_u32 v38, s31, v38")
    k("ds_read_b128 v[48:51], v38")
    k("ds_read_b128 v[52:55], v38 offset:16")
    k("ds_read_b128 v[56:59], v38 offset:8192")
    k("ds_read_b128 v[60:63], v38 offset:8208")
    t4(2, 64)
    k("s_waitcnt lgkmcnt(0)")
    for e in range(8): k(f"v_add_f32 v{48+e}, v{48+e}, v{56+e}")
    k("s_mov_b32 exec_lo, 0")
    pat = [0,0,1,2,2,2,3,4]
    for e in range(7,0,-1): k(f"v_mov_b32 v{48+e}, v{48+pat[e]}")
    k("s_mov_b64 exec, 1")
    k("v_add_f32 v48, s63, v48")
    k("s_mov_b64 exec, -1")
    for i in range(4): k(f"v_cvt_pk_bf16_f32 v{56+i}, v{55-2*i}, v{54-2*i}")
    k("buffer_store_dwordx4 v[56:59], v34, s[16:19], s30 offen")
    t4fin(2, 64, 68)
    k.end()
    k("k1_exp1:")
    k("v_lshlrev_b32 v38, 3, v0")
    k("v_add_u32 v38, s31, v38")
    k("ds_read_b64 v[48:49], v38 offset:1536")
    k("ds_read_b32 v50, v38 offset:1544")
    k(f"ds_read_b64 v[52:53], v38 offset:{1536+8192}")
    k(f"ds_read_b32 v54, v38 offset:{1544+8192}")
    t4(3, 64)
    for i in range(4): k(f"v_mov_b32 v{72+i}, 0")
    k("v_lshlrev_b32 v39, 4, v0")
    k("s_add_u32 s21, s30, 4096")
    k("s_mov_b64 exec, 0xff")
    k("buffer_store_dwordx4 v[72:75], v39, s[16:19], s21 offen")
    k("s_mov_b64 exec, -1")
    k("s_waitcnt lgkmcnt(0)")
    for e in range(3): k(f"v_add_f32 v{48+e}, v{48+e}, v{52+e}")
    k("v_cvt_pk_bf16_f32 v56, v50, v50")
    k("v_cvt_pk_bf16_f32 v57, v49, v49")
    k("v_cvt_pk_bf16_f32 v58, v49, v48")
    k("v_cvt_pk_bf16_f32 v59, v48, v48")
    k("s_sub_u32 s20, s30, 1024")
    k("buffer_store_dwordx4 v[56:59], v34, s[16:19], s20 offen")
    t4fin(3, 64, 68)
    k.end()
    k("k1_end:")
    k("s_endpgm")
    return k, 176, LDS1
```

```python
from dsl import *
from common import *
import os

FL = 0
LP = 256
MP = LP + 2048
RB = MP + 2048
RD = 4*4160
UB = RB + 2*RD
UD = 96*80
PART = UB + 2*UD
CB = PART + 6*4096
LDS2 = CB + 49152

vL16, vFl, vOne, vT = 1, 2, 3, 4
vA, vB = 8, 9
Q = [12, 20]; KB = [28, 36]; VB = [44, 52]; S = [60, 76]; P = [92, 100]; O = [108, 124]
CA, FA, FB = 140, 156, 164
NV = 172

def signal(k, idx_off):
    k("s_mov_b64 exec, 1")
    k(f"ds_add_u32 v{vFl}, v{vOne} offset:{idx_off}")
    k("s_mov_b64 exec, -1")
def poll(k, vaddr, off, n):
    L = k.lab("poll")
    k(f"{L}:")
    k(f"ds_read_b32 v{vT}, v{vaddr} offset:{off}")
    k("s_waitcnt lgkmcnt(0)")
    k(f"v_readfirstlane_b32 s20, v{vT}")
    k(f"s_cmp_lt_u32 s20, {n}")
    k(f"s_cbranch_scc1 {L}")

def r4(a): return f"v[{a}:{a+3}]"
def r16(a): return f"v[{a}:{a+15}]"

def gen_k2(N1=2):
    k = K("k2_kernel")
    k("s_cmp_ge_u32 s2, 256")
    k("s_cbranch_scc1 k2_end")
    k("s_load_dwordx2 s[24:25], s[0:1], 112")
    PF = int(os.environ.get('PF2','0'))
    if PF:
        k("s_load_dwordx2 s[32:33], s[0:1], 16")
        k("s_load_dwordx2 s[40:41], s[0:1], 96")
    k("v_lshrrev_b32 v1, 6, v0")
    k("v_and_b32 v0, 63, v0")
    k("v_readfirstlane_b32 s3, v1")
    k.stamp_init(1, 24)
    k(f"v_lshlrev_b32 v{vL16}, 4, v0")
    k("s_and_b32 s4, s2, 7")
    k("s_lshl_b32 s4, s4, 1")
    k("s_lshr_b32 s5, s2, 3")
    k("s_lshr_b32 s20, s5, 4")
    k("s_add_u32 s4, s4, s20")
    k("s_and_b32 s5, s5, 15")
    k("s_lshr_b32 s6, s3, 2")
    k("s_and_b32 s7, s3, 3")
    k("s_lshl_b32 s26, s5, 2")
    k("s_lshl_b32 s20, s6, 1")
    k("s_add_u32 s26, s26, s20")
    k("s_lshl_b32 s20, s4, 6")
    k("s_add_u32 s22, s20, s26")
    k("s_lshl_b32 s22, s22, 11")
    k("s_lshl_b32 s23, s7, 4")
    k("s_add_u32 s23, s23, s20")
    k("s_lshl_b32 s23, s23, 12")
    k(f"s_add_u32 s23, s23, {WS_KV}")
    k("s_and_b32 s27, s3, 1")
    k("s_lshr_b32 s28, s3, 1")
    k("s_lshl_b32 s21, s2, 1")
    k("s_add_u32 s21, s21, s27")
    k("s_mov_b32 s19, 0")
    k(f"s_mul_i32 s20, s27, {UD}")
    k("s_mul_i32 s29, s28, 640")
    k("s_add_u32 s20, s20, s29")
    k(f"s_add_u32 s20, s20, {UB}")
    k(f"v_add_u32 v5, s20, v{vL16}")
    k("s_mul_i32 s20, s3, 4160")
    k(f"s_add_u32 s20, s20, {RB+4096-640}")
    k("s_mov_b32 exec_lo, 0")
    k("s_mov_b32 exec_hi, 0x0f00")
    k(f"v_add_u32 v5, s20, v{vL16}")
    k("s_mov_b32 exec_hi, 0xf000")
    k(f"v_add_u32 v5, {FL-704}, v{vL16}")
    k("s_mov_b64 exec, -1")
    for i in range(4): k(f"v_mov_b32 v{FA+i}, 0")
    k("s_mov_b32 exec_hi, 0xffff")
    k(f"ds_write_b128 v5, {r4(FA)}")
    k("s_mov_b64 exec, -1")
    k(f"v_mov_b32 v{vFl}, {FL}")
    k(f"v_mov_b32 v{vOne}, 1")
    k("s_waitcnt lgkmcnt(0)")
    k.stamp(1)
    k.diag_start(1, 24)
    srd(k, 8, 24, WS_SIZE)
    def ld(dst, s, off): k(f"buffer_load_dwordx4 {r4(dst)}, v{vL16}, s[8:11], s{s} offen" + (f" offset:{off}" if off else ""))
    def kvloads():
        k("s_add_u32 s12, s23, 4096")
        k("s_add_u32 s13, s23, 8192")
        k("s_add_u32 s14, s23, 12288")
        ld(KB[0], 23, 0); ld(KB[0]+4, 23, 1024)
        ld(KB[1], 12, 0); ld(KB[1]+4, 12, 1024)
        ld(VB[0], 23, 2048); ld(VB[0]+4, 23, 3072)
    def qloads():
        for i in range(4): ld(Q[0]+4*i, 22, 1024*i)
    k("s_mov_b32 s15, 8"); k("s_mov_b32 s17, 0"); k("s_mov_b32 s18, 0")
    k("s_cmp_ge_u32 s3, 4")
    k("s_cbranch_scc0 k2_heavy")
    qloads(); kvloads()
    k("s_barrier")
    k("s_cmp_ge_u32 s2, 224")
    k("s_cbranch_scc1 k2_start")
    k(f"s_mov_b32 s15, {N1}"); k("s_mov_b32 s17, 4"); k(f"s_mov_b32 s18, {4-N1}")
    k("s_branch k2_start")
    k("k2_heavy:")
    k("s_barrier")
    k("s_cmp_ge_u32 s2, 224")
    k("s_cbranch_scc1 k2_heavy_noconv")
    k("s_mov_b32 s15, 0"); k("s_mov_b32 s17, 8")
    k(f"s_mul_i32 s29, s21, {KR_STRIDE}")
    k(f"s_add_u32 s29, s29, {WS_KR}")
    k("s_lshl_b32 s20, s28, 2")
    k("s_add_u32 s29, s29, s20")
    k(f"s_mul_i32 s30, s27, {RD}")
    k("s_mul_i32 s20, s28, 8320")
    k("s_add_u32 s30, s30, s20")
    k(f"s_add_u32 s30, s30, {RB}")
    for c in range(2):
        for i in range(4):
            k(f"s_add_u32 m0, s30, {c*4160+i*1024}")
            k(f"s_add_u32 s20, s29, {2*c+i*1024}")
            k(f"buffer_load_dwordx4 v{vL16}, s[8:11], s20 offen lds")
    k("s_lshl_b32 s29, s21, 12")
    k(f"s_add_u32 s29, s29, {WS_UT}")
    k(f"s_mul_i32 s30, s27, {UD}")
    k("s_lshl_b32 s20, s28, 11")
    k("s_add_u32 s30, s30, s20")
    k(f"s_add_u32 s30, s30, {UB+2560}")
    k("s_lshl_b32 s31, s28, 7")
    for i in range(3):
        k(f"v_add_u32 v5, s31, v0")
        if i: k(f"v_add_u32 v5, {64*i}, v5")
        k("v_mul_u32_u24 v6, 52429, v5")
        k("v_lshrrev_b32 v6, 18, v6")
        k("v_mul_u32_u24 v7, 5, v6")
        k("v_sub_u32 v5, v5, v7")
        k("v_min_u32 v5, 3, v5")
        k("v_lshlrev_b32 v5, 4, v5")
        k(f"v_lshl_add_u32 v{FB+i}, v6, 6, v5")
        k(f"s_add_u32 m0, s30, {i*1024}")
        k("s_nop 0")
        k(f"buffer_load_dwordx4 v{FB+i}, s[8:11], s29 offen lds")
    k("k2_heavy_noconv:")
    qloads(); kvloads()
    k("k2_start:")
    k.stamp(2)
    k("v_and_b32 v5, 3, v0")
    k("v_sub_u32 v5, 3, v5")
    k("v_mul_u32_u24 v5, 4160, v5")
    k("v_bfe_u32 v6, v0, 2, 3")
    k("v_lshlrev_b32 v6, 3, v6")
    k("v_sub_u32 v5, v5, v6")
    k("v_lshrrev_b32 v6, 5, v0")
    k("v_lshlrev_b32 v6, 4, v6")
    k("v_add_u32 v5, v5, v6")
    k("s_max_u32 s29, s28, 1")
    k("s_sub_u32 s29, s29, 1")
    k("s_lshl_b32 s29, s29, 4")
    k("s_cmp_ge_u32 s28, 2")
    k("s_cselect_b32 s20, 16, 0")
    k("s_add_u32 s29, s29, s20")
    k(f"s_mul_i32 s30, s27, {RD}")
    k(f"s_add_u32 s30, s30, {RB+4088-256}")
    k("s_lshl_b32 s20, s29, 6")
    k("s_sub_u32 s30, s30, s20")
    k(f"v_add_u32 v{vA}, s30, v5")
    k("s_min_u32 s31, s28, 1")
    k("s_lshl_b32 s20, s31, 5")
    k("s_add_u32 s20, s20, 28")
    k("s_sub_u32 s20, s20, s29")
    k("s_mul_i32 s20, s20, 80")
    k(f"s_mul_i32 s30, s27, {UD}")
    k("s_add_u32 s20, s20, s30")
    k(f"s_add_u32 s20, s20, {UB}")
    k("v_and_b32 v5, 31, v0")
    k("v_mul_u32_u24 v5, 80, v5")
    k("v_add3_u32 v5, v5, v6, s20".replace("v5, v5, v6, s20", f"v{vB}, v5, v6, s20"))
    for i in range(16): k(f"v_mov_b32 v{CA+i}, 0")
    k("k2_restart:")
    for a, n in ((O[0],32),(P[1],8),(VB[1],8)):
        for i in range(n): k(f"v_mov_b32 v{a+i}, 0")
    k("s_mov_b32 s16, 0")
    k("s_cmp_eq_u32 s17, 8")
    k("s_cbranch_scc0 k2_nosig")
    k("s_waitcnt vmcnt(10)")
    k("s_lshl_b32 s20, s27, 2")
    k(f"v_mov_b32 v5, s20")
    k("s_mov_b64 exec, 1")
    k(f"ds_add_u32 v5, v{vOne} offset:{FL}")
    k("s_mov_b64 exec, -1")
    k("k2_nosig:")
    k.stamp(3)
    k("s_waitcnt vmcnt(4)")
    k.stamp(4)
    k(f"{MFMA} {r16(S[0])}, {r4(KB[0])}, {r4(Q[0])}, 0")
    k(f"{MFMA} {r16(S[0])}, {r4(KB[0]+4)}, {r4(Q[0]+4)}, {r16(S[0])}")
    k("s_nop 7"); k("s_nop 3")

    def creads(j, kk):
        o = 8*(3-j) + 4*kk
        k(f"ds_read2_b64 {r4(FA+4*kk)}, v{vA} offset0:{o} offset1:{o+1}")
        k(f"ds_read_b128 {r4(FB+4*kk)}, v{vB} offset:{80*(3-j)+32*kk}")
    def unit(j, conv):
        odd = j & 1; i1 = j >> 1
        sc, sn = S[odd], S[1-odd]
        pw, pr = P[odd], P[1-odd]
        kb = KB[i1] if not odd else KB[1-i1]
        qn = Q[1-odd]
        vb = VB[1-i1] if not odd else VB[i1]
        o = O[1-odd]
        E = [f"v_exp_f32 v{sc+r}, v{sc+r}" for r in range(16)]
        C = [f"v_cvt_pk_bf16_f32 v{pw+i}, v{sc+2*i}, v{sc+2*i+1}" for i in range(8)]
        QK0 = f"{MFMA} {r16(sn)}, {r4(kb)}, {r4(qn)}, 0"
        QK1 = f"{MFMA} {r16(sn)}, {r4(kb+4)}, {r4(qn+4)}, {r16(sn)}"
        PV0 = f"{MFMA} {r16(o)}, {r4(vb)}, {r4(pr)}, {r16(o)}"
        PV1 = f"{MFMA} {r16(o)}, {r4(vb+4)}, {r4(pr+4)}, {r16(o)}"
        C0 = f"{MFMA} {r16(CA)}, {r4(FA)}, {r4(FB)}, {r16(CA)}"
        C1 = f"{MFMA} {r16(CA)}, {r4(FA+4)}, {r4(FB+4)}, {r16(CA)}"
        def kl():
            if not odd:
                s = 13 if i1 == 0 else 14
                ld(kb, s, 0); ld(kb+4, s, 1024)
        def vl():
            if not odd:
                s = 12 if i1 == 0 else 13
                ld(vb, s, 2048); ld(vb+4, s, 3072)
        if odd: k("s_waitcnt vmcnt(4)")
        if conv:
            k(QK0); k(E[0]); k(E[1]); k(E[2]); k(C[0])
            k("s_waitcnt lgkmcnt(2)")
            k(C0); creads(j, 0); k(E[3]); k(E[4]); k(E[5]); k(C[1])
            k(PV0); k(E[6]); k(E[7]); k(C[2]); k(C[3])
            k(QK1); kl(); k(E[8]); k(E[9]); k(E[10]); k(C[4])
            k("s_waitcnt lgkmcnt(2)")
            k(C1); creads(j, 1); k(E[11]); k(E[12]); k(E[13]); k(C[5])
            k(PV1); vl(); k(E[14]); k(E[15]); k(C[6]); k(C[7])
        else:
            k(QK0); [k(E[r]) for r in range(0,4)]; k(C[0]); k(C[1])
            k(PV0); [k(E[r]) for r in range(4,8)]; k(C[2]); k(C[3])
            k(QK1); kl(); [k(E[r]) for r in range(8,12)]; k(C[4]); k(C[5])
            k(PV1); vl(); [k(E[r]) for r in range(12,16)]; k(C[6]); k(C[7])
    def adv():
        k("s_add_u32 s12, s12, 8192"); k("s_add_u32 s13, s13, 8192"); k("s_add_u32 s14, s14, 8192")
    k("k2_plain:")
    k("s_cmp_eq_u32 s15, 0")
    k("s_cbranch_scc1 k2_plain_done")
    k(".p2align 6")
    k("k2_lp:")
    for j in range(4): unit(j, False)
    adv()
    k("s_sub_u32 s15, s15, 1")
    k("s_cmp_lg_u32 s15, 0")
    k("s_cbranch_scc1 k2_lp")
    k("k2_plain_done:")
    k("s_cmp_eq_u32 s17, 0")
    k("s_cbranch_scc1 k2_tail")
    k("s_lshl_b32 s20, s27, 2")
    k("v_mov_b32 v5, s20")
    k.stamp(5)
    poll(k, 5, FL, 2)
    k.stamp(6)
    creads(-1, 0); creads(-1, 1)
    k(".p2align 6")
    k("k2_lc:")
    for j in range(4): unit(j, True)
    adv()
    k(f"v_subrev_u32 v{vA}, 256, v{vA}")
    k(f"v_subrev_u32 v{vB}, 320, v{vB}")
    k("s_sub_u32 s17, s17, 1")
    k("s_cmp_lg_u32 s17, 0")
    k("s_cbranch_scc1 k2_lc")
    k.stamp(7)
    k("s_mov_b32 s15, s18")
    k("s_waitcnt lgkmcnt(0)")
    k("s_cmp_eq_u32 s28, 0")
    k("s_cbranch_scc1 k2_cstore")
    k("s_mul_i32 s29, s27, 12288")
    k(f"s_add_u32 s29, s29, {PART}")
    k("s_lshl_b32 s20, s28, 12")
    k("s_add_u32 s20, s20, s29")
    k("s_sub_u32 s20, s20, 4096")
    k(f"v_add_u32 v6, s20, v{vL16}")
    for q in range(4): k(f"ds_write_b128 v6, {r4(CA+4*q)} offset:{1024*q}")
    k("s_mov_b64 exec, 1")
    k(f"ds_add_rtn_u32 v7, v5, v{vOne} offset:{FL+8}")
    k("s_mov_b64 exec, -1")
    k("s_waitcnt lgkmcnt(0)")
    k("v_readfirstlane_b32 s20, v7")
    k("s_cmp_eq_u32 s20, 2")
    k("s_cbranch_scc0 k2_plain")
    k(f"v_add_u32 v6, s29, v{vL16}")
    for q in range(4): k(f"ds_read_b128 {r4(CA+4*q)}, v6 offset:{1024*q}")
    for q in range(4): k(f"ds_read_b128 {r4(FA+4*q)}, v6 offset:{4096+1024*q}")
    k("s_waitcnt lgkmcnt(0)")
    for r in range(16): k(f"v_add_f32 v{CA+r}, v{CA+r}, v{FA+r}")
    for q in range(4): k(f"ds_read_b128 {r4(FA+4*q)}, v6 offset:{8192+1024*q}")
    k("s_waitcnt lgkmcnt(0)")
    for r in range(16): k(f"v_add_f32 v{CA+r}, v{CA+r}, v{FA+r}")
    k("k2_cstore:")
    for i in range(8): k(f"v_cvt_pk_bf16_f32 v{FA+i}, v{CA+2*i}, v{CA+2*i+1}")
    k("v_and_b32 v6, 31, v0")
    k("v_lshlrev_b32 v6, 6, v6")
    k("v_lshrrev_b32 v7, 5, v0")
    k("v_lshl_add_u32 v6, v7, 4, v6")
    k("s_lshl_b32 s20, s21, 12")
    k("s_lshl_b32 s29, s31, 11")
    k("s_add_u32 s20, s20, s29")
    k(f"s_add_u32 s20, s20, {WS_YT}")
    for a in (0, 1, 4, 5): k(f"v_permlane32_swap_b32 v{FA+a}, v{FA+a+2}")
    k(f"buffer_store_dwordx4 {r4(FA)}, v6, s[8:11], s20 offen")
    k(f"buffer_store_dwordx4 {r4(FA+4)}, v6, s[8:11], s20 offen offset:32")
    k("s_branch k2_plain")
    k("k2_tail:")
    k.stamp(8)
    if PF:
        k("s_cmp_ge_u32 s3, 2")
        k("s_cbranch_scc1 k2_nopf")
        k("s_mov_b32 s34, 401408"); k("s_mov_b32 s35, 0x00020000")
        k("s_mov_b32 s42, 3670016"); k("s_mov_b32 s43, 0x00020000")
        k("s_lshr_b32 s20, s2, 3")
        k("s_mul_i32 s20, s20, 98")
        k("s_lshl_b32 s29, s3, 6")
        k("s_add_u32 s20, s20, s29")
        k("v_add_u32 v5, s20, v0")
        k("v_lshlrev_b32 v5, 7, v5")
        k(f"buffer_load_dword v{NV}, v5, s[32:35], 0 offen")
        if PF >= 2:
            k("v_lshlrev_b32 v5, 16, v0")
            k(f"buffer_load_dword v{NV+1}, v5, s[40:43], 0 offen")
        k("k2_nopf:")
    k(f"{MFMA} {r16(O[1])}, {r4(VB[1])}, {r4(P[1])}, {r16(O[1])}")
    k(f"{MFMA} {r16(O[1])}, {r4(VB[1]+4)}, {r4(P[1]+4)}, {r16(O[1])}")
    k("v_and_b32 v5, 31, v0")
    k("v_lshlrev_b32 v5, 4, v5")
    k("s_lshl_b32 s20, s6, 10")
    k(f"s_add_u32 s20, s20, {LP}")
    k("v_add_u32 v5, s20, v5")
    k("s_lshl_b32 s20, s7, 2")
    k("v_add_u32 v6, s20, v5")
    k("s_mul_i32 s20, s6, 24576")
    k(f"s_add_u32 s20, s20, {CB}")
    k(f"v_add_u32 v7, s20, v{vL16}")
    k("s_lshl_b32 s29, s19, 4")
    k("s_lshl_b32 s20, s6, 2")
    k("s_add_u32 s20, s20, s29")
    k(f"v_mov_b32 v10, s20")
    k("s_lshr_b32 s20, s7, 1")
    k("s_add_u32 s29, s26, s20")
    k("s_mul_i32 s29, s29, 28672")
    k(f"s_add_u32 s29, s29, {WS_OF}")
    k("s_and_b32 s20, s7, 1")
    k("s_lshl_b32 s20, s20, 2")
    k("s_mul_i32 s30, s4, 7")
    k("s_add_u32 s20, s20, s30")
    k("v_lshrrev_b32 v11, 5, v0")
    k("v_add_u32 v11, s20, v11")
    k(f"v_and_b32 v{FA}, 31, v0")
    k(f"v_lshlrev_b32 v{FA}, 4, v{FA}")
    k(f"v_and_b32 v{FA+1}, 1, v11")
    k(f"v_lshl_add_u32 v{FA}, v{FA+1}, 3, v{FA}")
    k(f"v_lshrrev_b32 v11, 1, v11")
    k(f"v_lshl_add_u32 v{FA}, v11, 9, v{FA}")
    k("s_mov_b32 exec_lo, 0")
    k(f"ds_write_b32 v6, v{O[0]+12}")
    k("s_mov_b32 exec_lo, -1")
    for q in range(1,4):
        k(f"s_cmp_eq_u32 s7, {q}")
        k(f"s_cbranch_scc1 k2_cmb{q}")
    T0 = S[0]
    LR = P[0]
    for q in range(4):
        k(f"k2_cmb{q}:")
        order = [o for o in range(4) if o != q]
        first = True
        for o in order:
            if o >= 2 and first:
                k("s_mov_b32 exec_lo, 0")
                k(f"ds_write_b32 v6, v{O[1]+12} offset:512")
                k("s_mov_b32 exec_lo, -1")
                first = False
            j = q if q < o else q-1
            src = O[o>>1] + 8*(o&1)
            k(f"ds_write_b128 v7, {r4(src)} offset:{o*6144+j*2048}")
            k(f"ds_write_b128 v7, {r4(src+4)} offset:{o*6144+j*2048+1024}")
        k("s_mov_b64 exec, 1")
        k(f"ds_add_u32 v10, v{vOne} offset:{FL+16}")
        k("s_mov_b64 exec, -1")
        k.stamp(9)
        poll(k, 10, FL+16, 4)
        k.stamp(10)
        k(f"ds_read_b128 {r4(LR)}, v5")
        k(f"ds_read_b128 {r4(LR+4)}, v5 offset:512")
        for j in range(3):
            for hf in range(2):
                k(f"ds_read_b128 {r4(T0+8*j+4*hf)}, v7 offset:{q*6144+j*2048+hf*1024}")
        k("s_waitcnt lgkmcnt(6)")
        for t in range(2):
            b = LR+4*t
            k(f"v_add_f32 v{b}, v{b}, v{b+1}")
            k(f"v_add_f32 v{b+2}, v{b+2}, v{b+3}")
            k(f"v_add_f32 v{b}, v{b}, v{b+2}")
        k(f"v_rcp_f32 v{LR+1}, v{LR+4*(q>>1)}")
        k(f"v_min_f32 v{LR+2}, v{LR}, v{LR+4}")
        k(f"v_add_f32 v{LR+5}, v{LR}, v{LR+4}")
        k(f"s_mov_b32 s20, {hex(f2u(2.0**-40))}")
        k(f"v_cmp_le_f32 vcc, s20, v{LR+2}")
        k(f"s_mov_b32 s20, {hex(f2u(2.0**40))}")
        k(f"v_cmp_ge_f32 s[30:31], s20, v{LR+5}")
        k("s_and_b64 vcc, vcc, s[30:31]")
        k("s_cmp_eq_u64 vcc, -1")
        k("s_cselect_b32 s20, 1, s19")
        k("s_cmp_eq_u32 s20, 0")
        k("s_cbranch_scc1 k2_fallback")
        own = O[q>>1] + 8*(q&1)
        for j in range(3):
            k(f"s_waitcnt lgkmcnt({4-2*j})")
            for r in range(8): k(f"v_add_f32 v{own+r}, v{own+r}, v{T0+8*j+r}")
        for r in range(8): k(f"v_mul_f32 v{own+r}, v{own+r}, v{LR+1}")
        for i in range(4): k(f"v_cvt_pk_bf16_f32 v{T0+i}, v{own+2*i}, v{own+2*i+1}")
        k(f"buffer_store_dwordx2 v[{T0}:{T0+1}], v{FA}, s[8:11], s29 offen")
        if q & 1: k("s_mov_b32 exec_hi, 0")
        k(f"buffer_store_dwordx2 v[{T0+2}:{T0+3}], v{FA}, s[8:11], s29 offen offset:512")
        if PF: k("s_waitcnt vmcnt(0)")
        k.end()
    k("k2_fallback:")
    k("s_waitcnt vmcnt(0) lgkmcnt(0)")
    M0_, M1_ = P[0], P[0]+1
    k(f"v_mov_b32 v{M0_}, 0xff800000"); k(f"v_mov_b32 v{M1_}, 0xff800000")
    k("s_mov_b32 s12, s23")
    k("s_mov_b32 s15, 16")
    k("k2_fb_lp:")
    ld(KB[0], 12, 0); ld(KB[0]+4, 12, 1024)
    k("s_waitcnt vmcnt(0)")
    for t in range(2):
        k(f"{MFMA} {r16(S[t])}, {r4(KB[0])}, {r4(Q[t])}, 0")
        k(f"{MFMA} {r16(S[t])}, {r4(KB[0]+4)}, {r4(Q[t]+4)}, {r16(S[t])}")
    for t in range(2):
        for r in range(0,16,2): k(f"v_max3_f32 v{M0_+t}, v{M0_+t}, v{S[t]+r}, v{S[t]+r+1}")
    k("s_add_u32 s12, s12, 4096")
    k("s_sub_u32 s15, s15, 1")
    k("s_cmp_lg_u32 s15, 0")
    k("s_cbranch_scc1 k2_fb_lp")
    for t in range(2):
        k(f"v_mov_b32 v{M0_+2}, v{M0_+t}")
        k(f"v_permlane32_swap_b32 v{M0_+t}, v{M0_+2}")
        k(f"v_max_f32 v{M0_+t}, v{M0_+t}, v{M0_+2}")
        k(f"ds_write_b32 v6, v{M0_+t} offset:{MP-LP+512*t}")
    k("s_mov_b64 exec, 1")
    k(f"ds_add_u32 v10, v{vOne} offset:{FL+24}")
    k("s_mov_b64 exec, -1")
    poll(k, 10, FL+24, 4)
    k(f"ds_read_b128 {r4(T0)}, v5 offset:{MP-LP}")
    k(f"ds_read_b128 {r4(T0+4)}, v5 offset:{MP-LP+512}")
    k("s_waitcnt lgkmcnt(0)")
    k("s_mov_b32 exec_lo, 0")
    for t in range(2):
        b = T0+4*t
        k(f"v_max3_f32 v{b}, v{b}, v{b+1}, v{b+2}")
        k(f"v_max_f32 v{b}, v{b}, v{b+3}")
        k(f"v_sub_f32 v{b}, 0, v{b}")
        k(f"v_and_b32 v{b+1}, 0xffff0000, v{b}")
        k(f"v_sub_f32 v{b}, v{b}, v{b+1}")
        k(f"v_and_b32 v{b+2}, 0xffff0000, v{b}")
        k(f"v_sub_f32 v{b}, v{b}, v{b+2}")
        k(f"v_lshrrev_b32 v{Q[t]+7}, 16, v{b}")
        k(f"v_lshrrev_b32 v{b+1}, 16, v{b+1}")
        k(f"v_or_b32 v{Q[t]+6}, v{b+1}, v{b+2}")
    k("s_mov_b32 exec_lo, -1")
    k("s_mov_b32 s19, 1")
    k("s_mov_b32 s15, 8"); k("s_mov_b32 s17, 0"); k("s_mov_b32 s18, 0")
    kvloads()
    k("s_branch k2_restart")
    k("k2_end:")
    k("s_endpgm")
    return k, NV+4, LDS2
```

```python
import sys
L=open(sys.argv[1]).read().split('\n')
out=[]; ent=False; first=True
for i,l in enumerate(L):
    s=l.strip()
    if s.endswith('_kernel:') and first:
        first=False
        out.append(l)
        out+=['    s_memrealtime s[66:67]','    s_load_dwordx2 s[68:69], s[0:1], 104','    s_mov_b32 s72, 0','    s_mov_b32 s74, 0','    s_mov_b32 s76, -1','    s_memtime s[78:79]']
        continue
    if s=='k2_entry:': ent=True
    if s=='k2_entry_nb:':
        out.append(l); out.append('    s_memrealtime s[72:73]'); continue
    if s=='k2_restart:' :
        out.append('    s_memrealtime s[74:75]'); out.append('    s_memrealtime s[76:77]'); out.append('    s_waitcnt lgkmcnt(0)'); out.append(l); continue
    if s=='s_endpgm' and ent and L[i-1].strip()!='k2_end:':
        out+=['    s_memrealtime s[70:71]','    s_memtime s[80:81]','    s_waitcnt lgkmcnt(0)','    s_mov_b64 exec, 1','    v_mov_b32 v1, 0',
              '    s_not_b32 s82, s66','    s_not_b32 s76, s76','    s_sub_u32 s80, s80, s78','    s_sub_u32 s83, s70, s66',
              '    v_mov_b32 v2, s82','    v_mov_b32 v3, s70','    v_mov_b32 v4, s72','    v_mov_b32 v5, s74','    v_mov_b32 v6, s76','    v_mov_b32 v7, s66','    v_mov_b32 v8, s80','    v_mov_b32 v9, s83']
        for j,v in enumerate(range(2,10)):
            out.append(f'    global_atomic_umax v1, v{v}, s[68:69] offset:{16+4*j} sc1')
        out.append('    s_waitcnt vmcnt(0)')
    out.append(l)
open(sys.argv[2],'w').write('\n'.join(out))
```

```python
import sys
L=open(sys.argv[1]).read().split('\n')
out=[]; ent=False; first=True; n=0
for i,l in enumerate(L):
    s=l.strip()
    if s.endswith('_kernel:') and first:
        first=False
        out.append(l)
        out+=['    s_memrealtime s[86:87]','    s_load_dwordx2 s[88:89], s[0:1], 104','    s_mov_b32 s92, 0','    s_mov_b32 s94, 0','    s_memtime s[98:99]',
              '    v_readfirstlane_b32 s84, v0','    s_mov_b32 s85, s2']
        continue
    if s=='k2_entry:': ent=True
    if s=='k2_entry_nb:':
        out.append(l); out.append('    s_memrealtime s[92:93]'); continue
    if s=='k2_restart:' :
        out.append('    s_memrealtime s[94:95]'); out.append('    s_waitcnt lgkmcnt(0)'); out.append(l); continue
    if s=='s_endpgm' and ent and L[i-1].strip()!='k2_end:':
        n+=1
        out+=['    s_memrealtime s[90:91]','    s_memtime s[100:101]','    s_waitcnt lgkmcnt(0)','    s_cmp_lg_u32 s84, 0',f'    s_cbranch_scc1 dbg_e{n}','    s_mov_b64 exec, 1','    v_mov_b32 v1, 0',
              '    s_not_b32 s82, s86','    s_not_b32 s96, s94','    s_sub_u32 s100, s100, s98','    s_sub_u32 s83, s90, s86',
              '    v_mov_b32 v2, s82','    v_mov_b32 v3, s90','    v_mov_b32 v4, s92','    v_mov_b32 v5, s94','    v_mov_b32 v6, s96','    v_mov_b32 v7, s86','    v_mov_b32 v8, s100','    v_mov_b32 v9, s83']
        for j,v in enumerate(range(2,10)):
            if j==2: out+=['    s_and_b32 s85, s85, 15','    s_cmp_lg_u32 s85, 5',f'    s_cbranch_scc1 dbg_e{n}']
            out.append(f'    global_atomic_umax v1, v{v}, s[88:89] offset:{16+4*j} sc1')
        out.append(f'dbg_e{n}:')
    out.append(l)
open(sys.argv[2],'w').write('\n'.join(out))
```
